```python
import torch

def _softmax(x, axis=-1):
    return torch.softmax(x, dim=axis)

def _gelu(x):
    return torch.nn.functional.gelu(x, approximate='tanh')

def _silu(x):
    return torch.nn.functional.silu(x)

def _sigmoid(x):
    return torch.sigmoid(x)

def _layernorm(x, axis=-1, eps=1e-05):
    m = x.mean(dim=axis, keepdim=True)
    v = x.var(dim=axis, keepdim=True, unbiased=False)
    return (x - m) / torch.sqrt(v + eps)

def _scatter_add(tgt, idx, src, axis=0):
    return tgt.clone().index_add_(axis, idx, src)

def _segment_sum(src, seg, n):
    out = torch.zeros((n,) + src.shape[1:], dtype=src.dtype)
    return out.index_add_(0, seg, src)

def _pad(x, pw):
    flat = tuple((v for pair in reversed(pw) for v in pair))
    return torch.nn.functional.pad(x, flat)
kernel_name = 'concat_heads__memory_aug_recurrent_mem_tr__mha_block__prompt'

def setup_inputs():

    _w = lambda a: (lambda t: t.to(torch.bfloat16) if t.is_floating_point() else t)(torch.as_tensor(a))

    def _A_setup():
        B, S, Dm = (1, 2048, 512)
        H, Dh = (32, 128)
        M, seg = (8, 32)
        seg = min(seg, S)
        S = S // seg * seg
        return {'x': _w((lambda *s: torch.randn(*s, dtype=torch.bfloat16) * 0.05)(B, S, Dm)), 'mem0': _w((lambda *s: torch.randn(*s, dtype=torch.bfloat16) * 0.8)(B, M, Dm)), 'Wq': _w((lambda *s: torch.randn(*s, dtype=torch.bfloat16) * 1.6)(Dm, H, Dh) * Dm ** (-0.5)), 'Wk': _w((lambda *s: torch.randn(*s, dtype=torch.bfloat16) * 1.6)(Dm, H, Dh) * Dm ** (-0.5)), 'Wv': _w((lambda *s: torch.randn(*s, dtype=torch.bfloat16) * 0.8)(Dm, H, Dh) * Dm ** (-0.5)), 'Wo': _w((lambda *s: torch.randn(*s, dtype=torch.bfloat16) * 0.8)(H, Dh, Dm) * (H * Dh) ** (-0.5)), 'seg_len': seg}
    _A_in = _A_setup()

    def _B_setup():
        B, S, D, H = (1, 2048, 512, 32)
        return {'x': _w((lambda *s: torch.randn(*s, dtype=torch.bfloat16) * 0.2)(B, S, D)), 'wqkv': _w((lambda *s: torch.randn(*s, dtype=torch.bfloat16) * 0.2)(D, 3 * D)), 'wo': _w((lambda *s: torch.randn(*s, dtype=torch.bfloat16) * 0.05)(D, D))}
    _B_in = _B_setup()
    return {'A_x': _A_in['x'], 'A_mem0': _A_in['mem0'], 'A_Wq': _A_in['Wq'], 'A_Wk': _A_in['Wk'], 'A_Wv': _A_in['Wv'], 'A_Wo': _A_in['Wo'], 'A_seg_len': _A_in['seg_len'], 'B_x': _B_in['x'], 'B_wqkv': _B_in['wqkv'], 'B_wo': _B_in['wo']}

def reference(A_x, A_mem0, A_Wq, A_Wk, A_Wv, A_Wo, A_seg_len, B_x, B_wqkv, B_wo):

    def _A_ref(x, mem0, Wq, Wk, Wv, Wo, seg_len):
        B, S, Dm = x.shape
        H, Dh = (Wq.shape[1], Wq.shape[2])
        M = mem0.shape[1]
        scale = Dh ** (-0.5)
        n_seg = S // seg_len
        L = M + seg_len
        idx = torch.arange(L)
        mask = (idx[:, None] < M) | (idx[:, None] >= idx[None, :])
        mem = mem0
        outs = []
        for s in range(n_seg):
            xs = x[:, s * seg_len:(s + 1) * seg_len, :].clone()
            h = torch.concatenate([mem, xs], axis=1)
            q = torch.einsum('btd,dhe->bhte', h, Wq)
            k = torch.einsum('btd,dhe->bhte', h, Wk)
            v = torch.einsum('btd,dhe->bhte', h, Wv)
            scores = torch.einsum('bhqe,bhke->bhqk', q, k) * scale
            scores = torch.where(mask[None, None], scores, -1000000000.0)
            p = _softmax(scores, axis=-1)
            o = torch.einsum('bhqk,bhke->bhqe', p, v)
            o = torch.einsum('bhte,hed->btd', o, Wo)
            mem = o[:, :M, :].clone()
            outs.append(o[:, M:, :])
        return torch.concatenate(outs, axis=1)

    def _B_ref(x, wqkv, wo):
        B, S, D = x.shape
        H = 32
        Dh = D // H
        qkv = (lambda x, *d: x.permute(*d))((x @ wqkv).reshape(B, S, 3, H, Dh), 2, 0, 3, 1, 4)
        q, k, v = (qkv[0], qkv[1], qkv[2])
        scores = torch.einsum('bhqd,bhkd->bhqk', q, k) * Dh ** (-0.5)
        p = _softmax(scores, axis=-1)
        o = torch.einsum('bhqk,bhkd->bhqd', p, v)
        return (lambda x, *d: x.permute(*d))(o, 0, 2, 1, 3).reshape(B, S, D) @ wo
    a = _A_ref(A_x, A_mem0, A_Wq, A_Wk, A_Wv, A_Wo, A_seg_len)
    b = _B_ref(B_x, B_wqkv, B_wo)
    return torch.concatenate([a, b], axis=-1)
```

```python
import re

_REG = re.compile(r'^(-|abs\()?([vas])(?:(\d+)|\[(\d+):(\d+)\])\)?$')

def regs_of(tok):
    tok = tok.strip()
    if tok in ('vcc',): return {('s', 'vcc')}
    if tok in ('vcc_lo', 'vcc_hi'): return {('s', 'vcc')}
    if tok in ('exec', 'exec_lo', 'exec_hi'): return {('s', 'exec')}
    if tok == 'm0': return {('s', 'm0')}
    t = tok
    if t.startswith('-'): t = t[1:]
    if t.startswith('abs(') and t.endswith(')'): t = t[4:-1]
    if t.startswith('|') and t.endswith('|'): t = t[1:-1]
    m = re.match(r'^([vas])(?:(\d+)|\[(\d+):(\d+)\])$', t)
    if not m: return set()
    k = m.group(1)
    if m.group(2) is not None: return {(k, int(m.group(2)))}
    return {(k, i) for i in range(int(m.group(3)), int(m.group(4)) + 1)}

TRANS = ('v_exp_f32', 'v_log_f32', 'v_rcp_f32', 'v_rsq_f32', 'v_sqrt_f32', 'v_sin_f32', 'v_cos_f32', 'v_rcp_iflag_f32')

class Ins:
    __slots__ = ('text', 'op', 'cls', 'w', 'r', 'srcc', 'srcab', 'passes', 'dpp', 'storedata', 'lds_dma', 'nop')
    def __init__(self, text):
        self.text = text
        body = text.split(';')[0].strip()
        parts = body.split(None, 1)
        self.op = op = parts[0]
        rest = parts[1] if len(parts) > 1 else ''
        ops = [o.strip() for o in re.split(r',(?![^\[]*\])', rest)] if rest else []
        mods = ''
        if ops:
            last = ops[-1].split(None, 1)
            if len(last) > 1 and not last[0].startswith('hwreg') and '(' not in last[0]:
                ops[-1] = last[0]; mods = last[1]
        self.w = set(); self.r = set(); self.srcc = set(); self.srcab = set(); self.passes = 0
        self.dpp = ('_dpp' in op) or ('row_' in mods) or ('quad_perm' in mods)
        self.storedata = set(); self.lds_dma = False; self.nop = 0
        R = [regs_of(o) for o in ops]
        if op.startswith('v_mfma') or op.startswith('v_smfmac'):
            self.cls = 'mfma'
            self.passes = 8 if '32x32' in op else 4
            self.w = R[0]
            self.srcab = R[1] | R[2]
            if op.startswith('v_smfmac'):
                self.srcc = R[0]; self.srcab |= R[3]
            else:
                self.srcc = R[3]
            self.r = self.srcab | self.srcc
        elif op.startswith('v_'):
            self.cls = 'valu'
            if 'permlane' in op and 'swap' in op:
                self.w = R[0] | R[1]; self.r = R[0] | R[1]
            elif op.startswith('v_cmpx'):
                self.w = R[0] | {('s', 'exec')}; self.r = set().union(*R[1:])
            elif op.startswith(('v_add_co', 'v_sub_co', 'v_addc_co', 'v_subb_co', 'v_subrev_co', 'v_mad_u64')):
                self.w = R[0] | R[1]; self.r = set().union(*R[2:])
            elif op == 'v_nop':
                pass
            else:
                self.w = R[0]; self.r = set().union(*R[1:]) if len(R) > 1 else set()
                if op.startswith(('v_fmac', 'v_pk_fmac', 'v_writelane', 'v_dot2c')) or self.dpp: self.r |= R[0]
                if op.startswith('v_cndmask') and len(ops) == 3: self.r |= {('s', 'vcc')}
        elif op.startswith('ds_'):
            self.cls = 'ds'
            if op.startswith(('ds_read', 'ds_bpermute', 'ds_permute', 'ds_swizzle')) or '_rtn' in op:
                self.w = R[0]; self.r = set().union(*R[1:])
            else:
                self.r = set().union(*R)
        elif op.startswith(('global_', 'buffer_', 'flat_')):
            self.cls = 'vmem'
            if op in ('buffer_wbl2', 'buffer_inv'):
                pass
            elif 'load_lds' in op or (op.startswith('buffer_load') and re.search(r'\blds\b', mods)):
                self.lds_dma = True; self.r = set().union(*R) | {('s', 'm0')}
            elif '_load' in op:
                self.w = R[0]; self.r = set().union(*R[1:])
            elif 'atomic' in op:
                if 'sc0' in mods.split():
                    if op.startswith('global'): self.w = R[0]; self.r = set().union(*R[1:])
                    else: self.w = R[0]; self.r = set().union(*R)
                else: self.r = set().union(*R)
            else:
                self.r = set().union(*R)
                if op.endswith(('x3', 'x4')):
                    self.storedata = R[1] if op.startswith(('global', 'flat')) else R[0]
        elif op.startswith('s_'):
            self.cls = 'salu'
            if op == 's_nop': self.nop = int(ops[0], 0) + 1
            elif op.startswith(('s_cmp', 's_cbranch', 's_branch', 's_waitcnt', 's_barrier', 's_endpgm', 's_setpc', 's_sleep', 's_setprio', 's_bitcmp')):
                self.r = set().union(*R) if R else set()
            else:
                self.w = R[0] if R else set(); self.r = set().union(*R[1:]) if len(R) > 1 else set()
                if 'saveexec' in op: self.w |= {('s', 'exec')}
        else:
            raise ValueError('unknown instr: ' + text)

def vg(s): return {x for x in s if x[0] in 'va'}
def sg(s): return {x for x in s if x[0] == 's'}

def need(p, c):
    n = 0
    if p.cls == 'valu':
        pw = vg(p.w); ps = sg(p.w)
        if c.cls == 'mfma':
            if pw & c.r: n = max(n, 2)
            if ('s', 'exec') in ps: n = max(n, 4)
        if c.cls == 'valu':
            if c.dpp and (pw & c.r): n = max(n, 2)
            if c.dpp and ('s', 'exec') in ps: n = max(n, 5)
            if 'permlane' in c.op and (pw & c.r): n = max(n, 2)
            if 'permlane' in c.op and ('s', 'exec') in ps: n = max(n, 4)
            if c.op.startswith(('v_readfirstlane', 'v_readlane')) and (pw & c.r): n = max(n, 1)
            if c.op.startswith(('v_readfirstlane', 'v_readlane', 'v_writelane')) and ('s', 'exec') in ps: n = max(n, 4)
            if c.op.startswith(('v_readlane', 'v_writelane')) and (ps & c.r): n = max(n, 4)
            if p.op.startswith(TRANS) and not c.op.startswith(TRANS) and (pw & c.r): n = max(n, 1)
            if ps & c.r: n = max(n, 2)
        if c.cls in ('ds', 'vmem') and p.op.startswith(TRANS) and (pw & c.r): n = max(n, 1)
        if c.cls == 'vmem' and (ps & c.r): n = max(n, 5)
        if c.cls == 'salu' and (ps & c.r): n = max(n, 1)
    elif p.cls == 'mfma':
        P = p.passes
        if c.cls == 'mfma':
            if p.w & c.srcab: n = max(n, {4: 8, 8: 12}[P])
            if p.w & c.srcc:
                if not (p.w == c.srcc and c.passes == P): n = max(n, {4: 6, 8: 10}[P])
            elif p.w & c.w:
                n = max(n, {4: 8, 8: 12}[P])
        elif c.cls in ('valu', 'ds', 'vmem'):
            if p.w & (c.r | c.w): n = max(n, {4: 8, 8: 12}[P])
            if c.cls == 'valu' and (p.srcc & c.w): n = max(n, {4: 3, 8: 7}[P])
            if c.cls in ('ds', 'vmem') and (p.srcc & c.w): n = max(n, {4: 3, 8: 7}[P])
    elif p.cls == 'vmem':
        if p.storedata & c.w: n = max(n, 2 if c.cls in ('valu', 'mfma') else 1)
    elif p.cls == 'salu':
        if ('s', 'm0') in p.w and c.lds_dma: n = max(n, 1)
    return n

class Asm:
    def __init__(self):
        self.items = []
        self.uid = 0
    def __call__(self, text):
        for line in text.split('\n'):
            s = line.strip()
            if not s: continue
            if s.startswith((';', '.')) or s.endswith(':'):
                self.items.append(s)
            else:
                self.items.append(Ins(s))
    def label(self, base='L'):
        self.uid += 1
        return f'{base}_{self.uid}'
    def finish(self):
        MAXD = 13
        items = self.items
        labels = {it[:-1]: i for i, it in enumerate(items) if isinstance(it, str) and it.endswith(':')}
        out = []
        hist = []
        def required(hist, c):
            n = 0
            for p, d in hist:
                k = need(p, c) - d
                if k > n: n = k
            return n
        def advance(hist, ins):
            step = ins.nop if ins.nop else 1
            h = [(p, d + step) for p, d in hist if d + step < MAXD]
            if not ins.nop: h.append((ins, 0))
            return h
        for i, it in enumerate(items):
            if isinstance(it, str):
                out.append(it); continue
            n = required(hist, it)
            if it.op.startswith(('s_cbranch', 's_branch')):
                tgt = it.text.split(';')[0].split()[1]
                if tgt in labels:
                    h2 = [(p, d + 1) for p, d in hist]
                    j = labels[tgt]; dist = 0
                    while j < len(items) and dist < MAXD:
                        c = items[j]; j += 1
                        if isinstance(c, str): continue
                        k = required([(p, d + dist) for p, d in h2], c)
                        if k > n: n = k
                        dist += c.nop if c.nop else 1
                        if c.op in ('s_branch', 's_endpgm'): break
            while n > 0:
                k = min(n, 16)
                nop = Ins(f's_nop {k-1}')
                out.append(nop); hist = advance(hist, nop); n -= k
            out.append(it)
            hist = advance(hist, it)
            if it.op in ('s_branch', 's_endpgm'): hist = []
        return '\n'.join(('    ' + x.text) if isinstance(x, Ins) else x for x in out) + '\n'

def vr(base, n=1, k='v'):
    return f'{k}{base}' if n == 1 else f'{k}[{base}:{base+n-1}]'
```

```python
from common import *
from gemm import gWS, gDBG, gW, gT0, gT1, gT2, gT3

bHD, bQT, bPASS, bI, bVM = 62, 63, 64, 65, 66
bFIRST = 68
vKS, vVS, vKA, vVA, vOD = 1, 2, 3, 4, 5
TA, TB = 6, 7
QF = [8, 12]; KF = [16, 20]; VF = [[24, 28], [32, 36]]
P = [40, 48]; S = [64, 80]; NM = [96, 112]; O = [128, 144]
THR = 0x41000000

def wait_counter(a, off, target, vt=(6, 7)):
    l = a.label('L_wc')
    a(f'v_mov_b32 v{vt[0]}, 0')
    a(f's_mov_b32 s{gT3}, 0')
    a(f's_cmp_eq_u32 s{gW}, 0')
    a(f's_cbranch_scc0 {l}_x')
    a(f'{l}:')
    a(f'global_load_dword v{vt[1]}, v{vt[0]}, s[{gDBG}:{gDBG+1}] offset:{off} sc1')
    a('s_waitcnt vmcnt(0)')
    a(f'v_readfirstlane_b32 s{gT2}, v{vt[1]}')
    a(f's_add_u32 s{gT3}, s{gT3}, 1')
    a(f's_cmp_ge_u32 s{gT3}, {SPIN}')
    a(f's_cbranch_scc1 {l}_x')
    a(f's_cmp_ge_u32 s{gT2}, {target}')
    a(f's_cbranch_scc1 {l}_x')
    a('s_sleep 8')
    a(f's_branch {l}')
    a(f'{l}_x:')
    a('s_barrier')

def emit_battn(a, cfg):
    WS = f's[{gWS}:{gWS+3}]'
    lg = Q(a, 'lgkmcnt', 15)
    wait_counter(a, DB_BQKV, 96)
    a('v_and_b32 v24, 63, v0')
    a('v_and_b32 v25, 7, v24')
    a('v_bfe_u32 v26, v24, 4, 1')
    a('v_lshl_add_u32 v27, v26, 3, v25')
    a(f'v_lshlrev_b32 v{vKS}, 4, v27')
    a('v_lshrrev_b32 v28, 5, v24')
    a(f'v_lshl_add_u32 v{vKS}, v28, 8, v{vKS}')
    a('v_bfe_u32 v29, v24, 3, 1')
    a(f'v_lshl_add_u32 v{vKS}, v29, 12, v{vKS}')
    a(f's_and_b32 s{gT0}, s{bHD}, 7')
    a(f's_lshl_b32 s{gT0}, s{gT0}, 9')
    a(f'v_add_u32 v{vKS}, s{gT0}, v{vKS}')
    a('v_and_b32 v30, 3, v24')
    a('v_lshl_add_u32 v30, v29, 2, v30')
    a('v_bfe_u32 v31, v24, 2, 1')
    a('v_lshl_add_u32 v30, v31, 3, v30')
    a('v_lshl_add_u32 v30, v26, 4, v30')
    a(f'v_lshlrev_b32 v{vOD}, 4, v30')
    a(f'v_lshl_add_u32 v{vOD}, v28, 9, v{vOD}')
    a('v_and_b32 v30, 3, v24')
    a(f'v_lshlrev_b32 v{vVS}, 4, v30')
    a('v_bfe_u32 v31, v24, 2, 2')
    a(f'v_lshl_add_u32 v{vVS}, v31, 10, v{vVS}')
    a('v_lshrrev_b32 v31, 4, v24')
    a(f'v_lshl_add_u32 v{vVS}, v31, 8, v{vVS}')
    a(f's_and_b32 s{gT0}, s{bHD}, 3')
    a(f's_lshl_b32 s{gT0}, s{gT0}, 6')
    a(f's_and_b32 s{gT1}, s{bHD}, 4')
    a(f's_lshl_b32 s{gT1}, s{gT1}, 10')
    a(f's_add_u32 s{gT0}, s{gT0}, s{gT1}')
    a(f'v_add_u32 v{vVS}, s{gT0}, v{vVS}')
    a(f's_lshr_b32 s{gT0}, s{bHD}, 3')
    a(f's_lshl_b32 s{gT0}, s{gT0}, 13')
    a(f's_add_u32 s{gT0}, s{gT0}, {WS_BQKV}')
    a(f's_mul_i32 s{gT1}, s{gW}, {16*BSEG}')
    a(f's_add_u32 s{gT1}, s{gT1}, s{gT0}')
    a(f's_add_u32 s{gT1}, s{gT1}, {4*8192}')
    a(f's_lshl_b32 s{gT2}, s{gW}, 14')
    for j in range(16):
        a(f's_add_u32 m0, s{gT2}, {j*1024}')
        a(f's_add_u32 s{gT3}, s{gT1}, {4*8192}')
        a(f'buffer_load_dwordx4 v{vKS}, {WS}, s{gT1} offen sc1 lds')
        a(f's_add_u32 m0, s{gT2}, {65536 + j*1024}')
        a(f's_add_u32 s{gT1}, s{gT1}, {BSEG}')
        a(f'buffer_load_dwordx4 v{vVS}, {WS}, s{gT3} offen sc1 lds')
    a(f's_mov_b32 s{bVM}, 0xffff\ns_mov_b32 s{bVM+1}, 0xffff')
    a(f's_lshl_b32 s{gT1}, s{gW}, 1')
    a(f's_add_u32 s{bQT}, s{bQT}, s{gT1}')
    a(f's_mov_b32 s69, s{gT0}')
    for b in range(2):
        for k in range(2):
            for i in range(4): a(f'v_mov_b32 v{VF[b][k]+i}, 0x3f803f80')
    a('s_waitcnt vmcnt(0)')
    a('s_barrier')
    a('L_ba_pass:')
    a(f's_mul_i32 s{gT1}, s{bQT}, {BSEG}')
    a(f's_add_u32 s{gT1}, s{gT1}, s69')
    a(f's_add_u32 s{gT2}, s{gT1}, {BSEG}')
    a(f'buffer_load_dwordx4 v[{QF[0]}:{QF[0]+3}], v{vKS}, {WS}, s{gT1} offen sc1')
    a(f'buffer_load_dwordx4 v[{QF[1]}:{QF[1]+3}], v{vKS}, {WS}, s{gT2} offen sc1')
    a('v_and_b32 v160, 63, v0')
    a(f'v_lshlrev_b32 v{vKA}, 4, v160')
    a('v_and_b32 v161, 3, v160')
    a('v_lshlrev_b32 v161, 2, v161')
    a('v_bfe_u32 v162, v160, 2, 1')
    a('v_lshl_add_u32 v161, v162, 1, v161')
    a('v_bfe_u32 v162, v160, 3, 1')
    a('v_add_u32 v161, v161, v162')
    a('v_lshlrev_b32 v161, 4, v161')
    a('v_lshrrev_b32 v162, 5, v160')
    a('v_lshl_add_u32 v161, v162, 8, v161')
    a(f'v_add_u32 v{vVA}, 0x10000, v161')
    for X in range(2):
        for r in range(0, 16, 2):
            a(f'v_mov_b64 v[{NM[X]+r}:{NM[X]+r+1}], 0')
            a(f'v_mov_b64 v[{O[X]+r}:{O[X]+r+1}], 0')
    for r in range(0, 8, 2): a(f'v_mov_b64 v[{P[1]+r}:{P[1]+r+1}], 0')
    def kread(b, off): lg.issue(f'ds_read_b128 v[{KF[b]}:{KF[b]+3}], v{vKA} offset:{off}', tag=('k', b))
    def vread(b, off):
        a(f's_mov_b64 exec, s[{bVM}:{bVM+1}]')
        for k in range(2): lg.issue(f'ds_read_b128 v[{VF[b][k]}:{VF[b][k]+3}], v{vVA} offset:{off + 512*k}', tag=('v', b))
        a('s_mov_b64 exec, -1')
    def smm(X, b): a(f'v_mfma_f32_32x32x16_bf16 v[{S[X]}:{S[X]+15}], v[{KF[b]}:{KF[b]+3}], v[{QF[X]}:{QF[X]+3}], v[{NM[X]}:{NM[X]+15}]')
    def pv(X, b, k): a(f'v_mfma_f32_32x32x16_bf16 v[{O[X]}:{O[X]+15}], v[{VF[b][k]}:{VF[b][k]+3}], v[{P[X]+4*k}:{P[X]+4*k+3}], v[{O[X]}:{O[X]+15}]')
    kread(0, 0); vread(1, 0)
    a(f's_mov_b32 s{bI}, 0')
    a(f's_mov_b32 s{bFIRST}, 0xff800000')
    a('s_waitcnt vmcnt(0) lgkmcnt(0)'); lg.reset()
    smm(0, 0)
    a('L_ba_loop:')
    rare = []
    for b in range(2):
        for X in range(2):
            T = TA
            s = S[X]
            if X == 0:
                smm(1, b)
                kread(1 - b, 1024 * (b + 1)); vread(b, 1024 * b)
            else:
                lg.wait(('k', 1 - b))
                smm(0, 1 - b)
            a(f'v_max3_f32 v{TA}, v{s}, v{s+1}, v{s+2}')
            a(f'v_max3_f32 v{TB}, v{s+3}, v{s+4}, v{s+5}')
            a(f'v_max3_f32 v{TA}, v{TA}, v{s+6}, v{s+7}')
            a(f'v_max3_f32 v{TB}, v{TB}, v{s+8}, v{s+9}')
            a(f'v_max3_f32 v{TA}, v{TA}, v{s+10}, v{s+11}')
            a(f'v_max3_f32 v{TB}, v{TB}, v{s+12}, v{s+13}')
            a(f'v_max3_f32 v{TA}, v{TA}, v{s+14}, v{s+15}')
            a(f'v_max_f32 v{TA}, v{TA}, v{TB}')
            a(f'v_cmp_lt_f32 vcc, s{bFIRST}, v{TA}')
            ob = (1 - b) if X == 0 else b
            if X == 1: lg.wait(('v', b))
            pv(1 - X, ob, 0)
            lr = a.label('L_ba_rs')
            a(f's_cbranch_vccnz {lr}')
            a(f'{lr}_r:')
            rare.append((lr, X))
            for r in range(16):
                a(f'v_exp_f32 v{s+r}, v{s+r}')
                if r == 3: pv(1 - X, ob, 1)
                if r % 2 == 1 and r >= 3: a(f'v_cvt_pk_bf16_f32 v{P[X] + (r-3)//2}, v{s+r-3}, v{s+r-2}')
            a(f'v_cvt_pk_bf16_f32 v{P[X]+7}, v{s+14}, v{s+15}')
            if X == 1 and b == 0: a(f's_mov_b32 s{bFIRST}, {THR:#x}')
    a(f'v_add_u32 v{vKA}, 2048, v{vKA}')
    a(f'v_add_u32 v{vVA}, 2048, v{vVA}')
    a(f's_add_u32 s{bI}, s{bI}, 1')
    a(f's_cmp_lt_u32 s{bI}, 32')
    a('s_cbranch_scc1 L_ba_loop')
    pv(1, 1, 0); pv(1, 1, 1)
    a(f's_lshl_b32 s{gT1}, s{bQT}, 15')
    a(f's_lshl_b32 s{gT2}, s{bHD}, 10')
    a(f's_add_u32 s{gT1}, s{gT1}, s{gT2}')
    a(f's_add_u32 s{gT1}, s{gT1}, {WS_BO}')
    a(f's_add_u32 s{gT2}, s{gT1}, 32768')
    for X in range(2):
        o = O[X]
        a(f'v_rcp_f32 v{TA}, v{o+8}')
        for r in range(8): a(f'v_mul_f32 v{o+r}, v{o+r}, v{TA}')
        for p in range(4): a(f'v_cvt_pk_bf16_f32 v{P[X]+p}, v{o+2*p}, v{o+2*p+1}')
        a(f'buffer_store_dwordx4 v[{P[X]}:{P[X]+3}], v{vOD}, {WS}, s{gT1 if X == 0 else gT2} offen sc1')
    a(f's_add_u32 s{bQT}, s{bQT}, 8')
    a(f's_sub_u32 s{bPASS}, s{bPASS}, 1')
    a(f's_cmp_lg_u32 s{bPASS}, 0')
    a('s_waitcnt lgkmcnt(0)')
    a('s_cbranch_scc1 L_ba_pass')
    a('s_waitcnt vmcnt(0)')
    a('s_barrier')
    a(f's_cmp_eq_u32 s{gW}, 0')
    a('s_cbranch_scc0 L_ba_done')
    a(f's_lshl_b32 s{gT0}, s70, 2\ns_add_u32 s{gT0}, s{gT0}, {DB_BATT}')
    a(f'v_mov_b32 v{TA}, s{gT0}\nv_mov_b32 v{TB}, 1')
    a('s_mov_b64 exec, 1')
    a(f'global_atomic_add v{TA}, v{TB}, s[{gDBG}:{gDBG+1}]')
    a('s_mov_b64 exec, -1')
    a('s_branch L_ba_done')
    for lr, X in rare:
        a(f'{lr}:')
        a(f'v_mov_b32 v{TB}, v{TA}')
        a(f'v_permlane32_swap_b32 v{TA}, v{TB}')
        a(f'v_max_f32 v{TA}, v{TA}, v{TB}')
        a(f'v_min_f32 v{TB}, 0, s{bFIRST}') if False else None
        a(f's_cmp_eq_u32 s{bFIRST}, {THR:#x}')
        a(f's_cbranch_scc0 {lr}_f')
        a(f'v_max_f32 v{TA}, 0, v{TA}')
        a(f'{lr}_f:')
        for r in range(16):
            a(f'v_sub_f32 v{S[X]+r}, v{S[X]+r}, v{TA}')
            a(f'v_sub_f32 v{NM[X]+r}, v{NM[X]+r}, v{TA}')
        a(f'v_max_f32 v{TA}, 0, v{TA}')
        a(f'v_sub_f32 v{TA}, 0, v{TA}')
        a(f'v_exp_f32 v{TA}, v{TA}')
        for r in range(16): a(f'v_mul_f32 v{O[X]+r}, v{O[X]+r}, v{TA}')
        a(f's_branch {lr}_r')
    a('L_ba_done:')
```

```python
from asmlib import *

KNAME = "concat_heads__memory_aug_recurrent_mem_tr__mha_block__prompt_kernel"
KA_X, KA_MEM0, KA_WQ, KA_WK, KA_WV, KA_WO, KA_SEG, KA_BX, KA_BWQKV, KA_BWO, KA_OUT, KA_DBG, KA_WS = [8 * i for i in range(13)]
WS_P    = 0x0000000
WS_M    = 0x0080000
WS_FLAG = 0x0088000
WS_STAMP= 0x0090000
WS_DUMMY= 0x00A0000
WS_MH   = 0x0100000
WS_KX   = 0x2000000
WS_VX   = 0x3000000
WS_QX   = 0x1100000 + 0x0F00000 - 0x1000000 + 0x3000000
WS_P4   = 0x5000000
WS_FLAG4= 0x008C000
WS_BQKV = 0x6000000
WS_BO   = 0x6800000
WS_BYTES = 268435456
assert WS_QX == 0x4000000

class Q:
    def __init__(self, a, name, maxn):
        self.a, self.name, self.maxn = a, name, maxn
        self.q = []
    def issue(self, text, tag=None):
        self.a(text); self.q.append(tag)
    def wait(self, tag):
        if tag not in self.q: return
        idx = len(self.q) - 1 - self.q[::-1].index(tag)
        n = len(self.q) - 1 - idx
        n = min(n, self.maxn)
        self.a(f's_waitcnt {self.name}({n})')
        self.q = self.q[len(self.q) - n:] if n else []
    def wait_all(self):
        self.a(f's_waitcnt {self.name}(0)'); self.q = []
    def reset(self): self.q = []

def srd(a, d, lo, hi, nbytes):
    a(f's_mov_b32 s{d}, s{lo}\ns_and_b32 s{d+1}, s{hi}, 0xffff\ns_mov_b32 s{d+2}, {nbytes}\ns_mov_b32 s{d+3}, 0x00020000')

DB_TICKET = 0
DB_GRP = 132
DB_T0 = 128
DB_INIT = 32
DB_BQKV = 36
DB_DUMMY = 40
DB_KV = 64
DB_Q = 96
DB_BATT = 160
SEGB = 32 * 8192
BSEG = 12 * 8192
SPIN = 200000
```

```python
from common import *

gWS, gDBG, gW = 8, 16, 18
gXS, gWTS, gDS = 20, 24, 28
gXB, gXSTEP, gXROW = 32, 33, 34
gDB, gDSTEP = 36, 37
gSC = 40
gCNT, gTYPE, gSIG, gSIGSTEP = 42, 43, 44, 45
gT0, gT1, gT2, gT3 = 46, 47, 48, 49
gWRS, gWB = 50, 51
gRET = 52
gN, gFL, gSLOT, gFSLOT = 54, 55, 56, 57
xSRC, xRD, xRDB, xD = 1, 2, 3, 4
xT = 8
XF = 32
ACC = 64
WL = 96
PITCH = 1056; SLOT = 32 * PITCH

def acc(u, t): return ACC + (u * 4 + t) * 4

def emit_gemm(a, cfg={}):
    vm = Q(a, 'vmcnt', 63); lg = Q(a, 'lgkmcnt', 15)
    a('L_gemm:')
    a('v_and_b32 v24, 63, v0')
    a('v_and_b32 v25, 15, v24')
    a('v_lshrrev_b32 v26, 4, v24')
    a(f'v_mul_u32_u24 v{xRDB}, {PITCH}, v25')
    a(f'v_lshl_add_u32 v{xRDB}, v26, 4, v{xRDB}')
    a(f's_and_b32 s{gT0}, s{gW}, 1')
    a(f's_lshl_b32 s{gT0}, s{gT0}, 4')
    a(f's_lshr_b32 s{gT1}, s{gW}, 1')
    a(f's_lshl_b32 s{gT1}, s{gT1}, 2')
    a(f's_add_u32 s{gT0}, s{gT0}, s{gT1}')
    a(f's_mul_i32 s{gT0}, s{gT0}, s{gXROW}')
    a(f's_add_u32 s{gXB}, s{gXB}, s{gT0}')
    a(f's_mul_i32 s{gFSLOT}, s{gW}, {8*PITCH}')
    a(f's_mov_b32 s{gSLOT}, 0')
    a(f's_mov_b32 s{gFL}, s{gCNT}')
    def fetch():
        out = []
        for j in range(8):
            tok = 8 * (j >> 2) + (j & 3)
            out.append([f's_mul_i32 s{gT2}, s{gXROW}, {tok}', f's_add_u32 s{gT2}, s{gT2}, s{gXB}', f's_add_u32 m0, s{gFSLOT}, {j*PITCH}',
                        f'buffer_load_dwordx4 v{xSRC}, s[{gXS}:{gXS+3}], s{gT2} offen {cfg.get("gld", "sc1")} lds'])
        out.append([f's_sub_u32 s{gFL}, s{gFL}, 1', f's_cmp_gt_i32 s{gFL}, 0', f's_cselect_b32 s{gT2}, s{gXSTEP}, 0', f's_add_u32 s{gXB}, s{gXB}, s{gT2}',
                    f's_add_u32 s{gFSLOT}, s{gFSLOT}, {SLOT}', f's_cmp_ge_u32 s{gFSLOT}, {4*SLOT}', f's_cselect_b32 s{gT2}, {4*SLOT}, 0', f's_sub_u32 s{gFSLOT}, s{gFSLOT}, s{gT2}'])
        return out
    a('s_barrier')
    for _ in range(3):
        for grp in fetch():
            for x in grp: a(x)
    vm.q += ['d'] * 24
    a('v_lshlrev_b32 v27, 3, v26')
    a(f'v_mul_lo_u32 v27, v27, s{gWRS}')
    a('v_lshl_add_u32 v27, v25, 3, v27')
    a(f's_mov_b32 s{gT1}, s{gWB}')
    a(f's_mul_i32 s{gT0}, s{gWRS}, 24')
    a(f's_mov_b32 s{gT2}, 0x05040100\ns_mov_b32 s{gT3}, 0x07060302')
    DEPTH = 4
    def wissue(k):
        for j in range(8):
            r = WL + (k % 8) * 16 + j * 2
            vm.issue(f'buffer_load_dwordx2 v[{r}:{r+1}], v27, s[{gWTS}:{gWTS+3}], s{gT1} offen', tag=('w', k))
            a(f's_add_u32 s{gT1}, s{gT1}, s{gWRS}')
        a(f's_add_u32 s{gT1}, s{gT1}, s{gT0}')
    for k in range(DEPTH): wissue(k)
    nxt = DEPTH
    for k in range(16):
        vm.wait(('w', k))
        while nxt < 16 and nxt < k + 7: wissue(nxt); nxt += 1
        b = WL + (k % 8) * 16
        for t in range(4):
            for p in range(4):
                a(f'v_perm_b32 v{224 + t*4 + p}, v{b + (2*p+1)*2 + (t>>1)}, v{b + (2*p)*2 + (t>>1)}, s{gT2 if t % 2 == 0 else gT3}')
        for i in range(16): a(f'v_accvgpr_write_b32 a{k*16 + i}, v{224 + i}')
    vm.wait_all()
    a(f's_mov_b32 s{gN}, 0')
    if cfg.get('wstamp'): a('s_memrealtime s[94:95]\ns_waitcnt lgkmcnt(0)')
    a(f's_cmp_eq_u32 s{gTYPE}, 1')
    a('s_cbranch_scc1 L_gemm_v')
    def signal():
        l = a.label('L_sig')
        a(f's_cmp_eq_u32 s{gW}, 0')
        a(f's_cbranch_scc0 {l}')
        a(f'v_mov_b32 v24, s{gSIG}\nv_mov_b32 v25, 1')
        a('s_mov_b64 exec, 1')
        a(f'global_atomic_add v24, v25, s[{gDBG}:{gDBG+1}]')
        a('s_mov_b64 exec, -1')
        a(f'{l}:')
        a(f's_add_u32 s{gSIG}, s{gSIG}, s{gSIGSTEP}')
    for typ in ('qk', 'v'):
        a(f'L_gemm_{typ}:')
        lg.reset()
        a(f'v_add_u32 v{xRD}, s{gSLOT}, v{xRDB}')
        a('s_waitcnt vmcnt(12)')
        a('s_barrier')
        def xread(n):
            k, u = n >> 1, n & 1
            r = XF + (n % 8) * 4
            lg.issue(f'ds_read_b128 v[{r}:{r+3}], v{xRD} offset:{u*16*PITCH + k*64}', tag=('x', n))
        for n in range(6): xread(n)
        l = a.label('L_ns')
        a(f's_and_b32 s{gT0}, s{gN}, 3')
        a(f's_cmp_eq_u32 s{gT0}, 1')
        a(f's_cbranch_scc0 {l}')
        a(f's_cmp_lt_u32 s{gN}, 5')
        a(f's_cbranch_scc1 {l}')
        signal()
        a(f'{l}:')
        fl = [x for grp in fetch() for x in grp]
        for n in range(32):
            k, u = n >> 1, n & 1
            lg.wait(('x', n))
            xr = XF + (n % 8) * 4
            for t in range(4):
                xa = f'v[{xr}:{xr+3}]'; wa = f'a[{k*16 + t*4}:{k*16 + t*4 + 3}]'
                d = acc(u, t); c = '0' if k == 0 else f'v[{d}:{d+3}]'
                if typ == 'qk': a(f'v_mfma_f32_16x16x32_bf16 v[{d}:{d+3}], {wa}, {xa}, {c}')
                else: a(f'v_mfma_f32_16x16x32_bf16 v[{d}:{d+3}], {xa}, {wa}, {c}')
                if t == 0 and n + 6 < 32: xread(n + 6)
                if t in (1, 2) and fl and n >= 2: a(fl.pop(0))
        assert not fl
        a(f's_add_u32 s{gSLOT}, s{gSLOT}, {SLOT}')
        a(f's_cmp_ge_u32 s{gSLOT}, {4*SLOT}')
        a(f's_cselect_b32 s{gSLOT}, 0, s{gSLOT}')
        a(f's_add_u32 s{gN}, s{gN}, 1')
        if typ == 'qk':
            a(f's_lshl_b32 s{gT0}, s{gTYPE}, 11')
            a(f's_add_u32 s{gT0}, s{gT0}, 4096')
            a(f's_add_u32 s{gT1}, s{gDB}, s{gT0}')
            a(f's_cmp_eq_u32 s{gTYPE}, 2')
        for r in range(0, 32, 2):
            a(f'v_pk_mul_f32 v[{ACC+r}:{ACC+r+1}], v[{ACC+r}:{ACC+r+1}], s[{gSC}:{gSC+1}]')
        for i in range(4):
            if typ == 'qk':
                u, sg = i >> 1, i & 1
                vals = [acc(u, t) + 2 * sg + rr for rr in range(2) for t in range(4)]
            else:
                vals = [acc(u, i) + r for u in range(2) for r in range(4)]
            d = xT + i * 4
            for p in range(4): a(f'v_cvt_pk_bf16_f32 v{d+p}, v{vals[2*p]}, v{vals[2*p+1]}')
        ST = cfg.get('gst', 'sc1')
        if typ == 'qk':
            a('s_cbranch_scc1 L_gemm_out')
            for i in range(4):
                a(f'buffer_store_dwordx4 v[{xT+4*i}:{xT+4*i+3}], v{xD}, s[{gDS}:{gDS+3}], s{gDB if i < 2 else gT1} offen offset:{(i&1)*256} {ST}')
        else:
            for i in range(4):
                a(f'buffer_store_dwordx4 v[{xT+4*i}:{xT+4*i+3}], v{xD}, s[{gDS}:{gDS+3}], s{gDB} offen offset:{i*1024} {ST}')
        a(f'L_gemm_{typ}_next:')
        a(f's_add_u32 s{gDB}, s{gDB}, s{gDSTEP}')
        a(f's_cmp_lt_u32 s{gN}, s{gCNT}')
        a(f's_cbranch_scc1 L_gemm_{typ}')
        a('s_branch L_gemm_end')
        if typ == 'qk':
            a('L_gemm_out:')
            for i in range(4):
                a(f'buffer_store_dwordx4 v[{xT+4*i}:{xT+4*i+3}], v{xD}, s[{gDS}:{gDS+3}], s{gDB if i < 2 else gT1} offen offset:{(i&1)*16}')
            a('s_branch L_gemm_qk_next')
    a('L_gemm_end:')
    a('s_waitcnt vmcnt(0)')
    a('s_barrier')
    signal()
    a(f's_setpc_b64 s[{gRET}:{gRET+1}]')

def call_gemm(a):
    a(f's_call_b64 s[{gRET}:{gRET+1}], L_gemm')
```

```python
from common import *

vL16, vLW, vKW, vQR, vQD, vPI, vPW, vPST, vPUB, vKX, vVX, vIDX = range(12)
T0, T1, vKR, T2, ONES, SEL = 12, 13, 14, 15, 16, 20
MF = [24 + 4 * i for i in range(8)]
BUF = [56 + 8 * i for i in range(7)]
VXR = [112, 116]
AQ = [120, 124]; AK = [128, 132]; AV = [136, 140]
QD = [56, 60]
QF = [64 + 4 * i for i in range(4)]
KF = [80 + 4 * i for i in range(4)]
SX, PX, SM, LL = 96, 100, 104, 108
O0, O1 = AQ
KXR = [104, 108]
VMF = 128
WOL = [64, 72, 80, 88, MF[0]]
WACC = [56, 60, 132, 96]
STD = [MF[2], MF[3]]
OF = MF[4:8]; RL = MF[4:6]; RACC = MF[7]
L1 = [('Q', 0, 1), ('Q', 1, 0), ('Q', 1, 1), ('K', 0, 0), ('K', 0, 1), ('K', 1, 0), ('Q', 0, 0)]
L2 = [('K', j, t) for j in range(2, 5) for t in range(2)]
L3 = [('O', 1, 3), ('O', 2, 2), ('O', 2, 3), ('O', 3, 2), ('O', 3, 3)]
LDS_MS = 0; LDS_K = 0; LDS_OI = 5184
LDS_Q = 9280; LDS_PI = 13888; LDS_SCR = 14912; LDS_PRB = 15168
IP, IG, IO1 = 320, 1312, 384
LDS_W = 16384; LDS_WAVE = 18 * 2048
assert LDS_W + 4 * LDS_WAVE == 163840
sWS, sWT, sDBG = 8, 12, 16
sW, sH, sSTEP = 18, 19, 20
sP0, sP1, sR0, sZ0 = 21, 22, 23, 24
sMN, sMC, sMO = 27, 28, 29
sKX, sVX, sMH = 30, 31, 32
sC = 34
sRET, sT0, sT1, sT2 = 36, 37, 38, 39
sPOLL, sWARM, sRNG, sFLAG = 40, 41, 42, 43
sRP, sFW, sFR = 25, 26, 33
sRDY = 44
sMK = 26 + 30
sST = 60

def op_home(w):
    home = {}
    lds = L1 + L2 + L3
    for i, k in enumerate(lds): home[k] = ('lds', i)
    allk = [(m, j, t) for m in 'QKV' for j in range(8) for t in range(2)] + [('O', j, T) for j in range(4) for T in range(4)]
    n = 0
    for k in allk:
        if k in home: continue
        home[k] = ('a', 8 * n) if n < 32 else ('v', 144 + 8 * (n - 32))
        n += 1
    assert n == 46
    return home

def emit_rec(a, cfg):
    ST = cfg.get('store_fl', '')
    a('v_and_b32 v28, 63, v0')
    a('v_and_b32 v24, 15, v28')
    a('v_lshrrev_b32 v25, 4, v28')
    a('v_and_b32 v26, 1, v25')
    a('v_lshrrev_b32 v27, 1, v25')
    a('v_and_b32 v31, 7, v24')
    a('v_lshrrev_b32 v32, 3, v24')
    a(f'v_lshlrev_b32 v{vL16}, 4, v28')
    a(f's_mul_i32 s{sT0}, s{sW}, {LDS_WAVE}')
    a(f's_add_u32 s{sT0}, s{sT0}, {LDS_W}')
    a(f'v_add_u32 v{vLW}, s{sT0}, v{vL16}')
    a('v_lshlrev_b32 v30, 2, v24')
    a(f's_lshl_b32 s{sT0}, s{sW}, 6')
    a(f'v_add_u32 v30, s{sT0}, v30')
    a(f'v_mul_u32_u24 v29, {IG}, v25')
    a(f'v_add_u32 v{vKW}, v29, v30')
    a('v_lshrrev_b32 v33, 2, v24')
    a(f'v_mul_u32_u24 v29, {IG}, v33')
    a('v_and_b32 v33, 3, v24')
    a(f'v_mul_u32_u24 v33, {IP}, v33')
    a('v_add_u32 v29, v29, v33')
    a(f'v_lshl_add_u32 v{vKR}, v25, 4, v29')
    a('v_lshrrev_b32 v29, 2, v31')
    a('v_and_b32 v33, 2, v31')
    a('v_add_u32 v29, v29, v33')
    a(f'v_mul_u32_u24 v29, {IG}, v29')
    a('v_and_b32 v33, 1, v31')
    a(f'v_mul_u32_u24 v33, {IO1}, v33')
    a('v_add_u32 v29, v29, v33')
    a(f'v_lshl_add_u32 v{vQR}, v25, 4, v29')
    a(f'v_add_u32 v{vQR}, {LDS_Q}, v{vQR}')
    a(f'v_lshl_add_u32 v{vQD}, v32, 7, v{vQR}')
    a('v_lshlrev_b32 v29, 4, v31')
    a(f'v_add_u32 v29, {LDS_PI}, v29')
    a(f'v_lshl_add_u32 v{vPI}, v25, 7, v29')
    a('v_lshl_add_u32 v29, v32, 9, v29')
    a('v_lshl_add_u32 v29, v26, 7, v29')
    a('v_lshl_add_u32 v29, v27, 2, v29')
    a(f's_lshr_b32 s{sT0}, s{sW}, 1')
    a(f's_lshl_b32 s{sT0}, s{sT0}, 8')
    a(f's_and_b32 s{sT1}, s{sW}, 1')
    a(f's_lshl_b32 s{sT1}, s{sT1}, 3')
    a(f's_add_u32 s{sT0}, s{sT0}, s{sT1}')
    a(f'v_add_u32 v{vPW}, s{sT0}, v29')
    a('v_lshrrev_b32 v36, 2, v24')
    a('v_lshl_add_u32 v29, v36, 1, v27')
    a(f's_lshl_b32 s{sT0}, s{sW}, 3')
    a(f'v_add_u32 v29, s{sT0}, v29')
    a('v_lshlrev_b32 v29, 13, v29')
    a('v_and_b32 v37, 3, v24')
    a('v_lshl_add_u32 v29, v26, 11, v29')
    a('v_lshl_add_u32 v29, v37, 4, v29')
    a(f's_lshl_b32 s{sT0}, s{sH}, 6')
    a(f'v_add_u32 v{vPST}, s{sT0}, v29')
    a('v_lshlrev_b32 v29, 4, v25')
    a('v_lshl_add_u32 v29, v37, 2, v29')
    a(f's_lshl_b32 s{sT0}, s{sH}, 8')
    a(f's_lshl_b32 s{sT1}, s{sW}, 6')
    a(f's_add_u32 s{sT0}, s{sT0}, s{sT1}')
    a(f'v_add_u32 v{vPUB}, s{sT0}, v29')
    a('v_lshlrev_b32 v29, 4, v31')
    a('v_lshl_add_u32 v29, v25, 8, v29')
    a('v_lshl_add_u32 v29, v32, 11, v29')
    a(f's_and_b32 s{sT0}, s{sW}, 1')
    a(f's_lshl_b32 s{sT0}, s{sT0}, 12')
    a(f's_lshr_b32 s{sT1}, s{sW}, 1')
    a(f's_lshl_b32 s{sT1}, s{sT1}, 7')
    a(f's_add_u32 s{sT0}, s{sT0}, s{sT1}')
    a(f'v_add_u32 v{vKX}, s{sT0}, v29')
    a(f'v_mov_b32 v{vIDX}, 0x4444')
    a('v_mov_b32 v29, 0xeeee')
    a('v_cmp_lt_u32 vcc, 7, v24')
    a(f'v_cndmask_b32 v{vIDX}, v{vIDX}, v29, vcc')
    for i in range(4): a(f'v_mov_b32 v{ONES+i}, 0x3f003f00')
    a(f's_mov_b32 s{sC}, 0x3e0293ee\ns_mov_b32 s{sC+1}, 0x3e0293ee')
    a(f's_mov_b32 s{sRNG}, {0x62800000 - 0x21800000}')
    a(f's_mov_b32 m0, {LDS_SCR}')
    POIS = 100
    for i in range(4): a(f'v_mov_b32 v{POIS+i}, -1')
    a(f's_lshl_b32 s{sT0}, s{sH}, 13')
    a(f's_lshl_b32 s{sT1}, s{sW}, 11')
    a(f's_add_u32 s{sT0}, s{sT0}, s{sT1}')
    a(f's_add_u32 s{sT1}, s{sT0}, 0x40000')
    for so in (sT0, sT1):
        for o in (0, 1024):
            a(f'buffer_store_dwordx4 v[{POIS}:{POIS+3}], v{vL16}, s[{sWS}:{sWS+3}], s{so} offen offset:{o} {ST}')
    for b in range(3):
        a(f's_mov_b32 s{sT2}, {WS_M + b*0x2000}')
        a(f'buffer_store_dword v{POIS}, v{vPUB}, s[{sWS}:{sWS+3}], s{sT2} offen {ST}')
    a(f's_lshl_b32 s{sT0}, s{sH}, 14')
    a(f's_lshl_b32 s{sT1}, s{sW}, 12')
    a(f's_add_u32 s{sT0}, s{sT0}, s{sT1}')
    a(f's_add_u32 s{sT0}, s{sT0}, {WS_MH}')
    for o in range(4):
        a(f'buffer_store_dwordx4 v[{POIS}:{POIS+3}], v{vL16}, s[{sWS}:{sWS+3}], s{sT0} offen offset:{o*1024} sc1')
    a('v_mov_b32 v33, 0')
    a(f'v_lshrrev_b32 v34, 2, v{vL16}')
    a(f's_lshl_b32 s{sFR}, s{sH}, 8')
    a(f's_add_u32 s{sFR}, s{sFR}, {WS_FLAG}')
    a(f'buffer_store_dword v33, v34, s[{sWS}:{sWS+3}], s{sFR} offen {ST}')
    a(f's_lshl_b32 s{sFW}, s{sH}, 2')
    a(f's_add_u32 s{sFW}, s{sFW}, {WS_FLAG}')
    a('v_lshlrev_b32 v29, 1, v27')
    a('v_lshl_add_u32 v29, v26, 4, v29')
    a('v_lshlrev_b32 v29, 13, v29')
    a('v_add_u32 v29, v29, v30')
    a(f's_lshl_b32 s{sT0}, s{sH}, 8')
    a(f'v_add_u32 v{T0}, s{sT0}, v29')
    a(f'v_sub_u32 v{vVX}, v{T0}, v30')
    a(f'v_lshl_add_u32 v{vVX}, v24, 3, v{vVX}')
    a(f's_lshr_b32 s{sT0}, s{sW}, 1')
    a(f's_lshl_b32 s{sT0}, s{sT0}, 7')
    a(f's_and_b32 s{sT1}, s{sW}, 1')
    a(f's_lshl_b32 s{sT1}, s{sT1}, 2')
    a(f's_add_u32 s{sT0}, s{sT0}, s{sT1}')
    a(f'v_add_u32 v{vVX}, s{sT0}, v{vVX}')
    a('v_lshlrev_b32 v29, 4, v27')
    a('v_lshl_add_u32 v29, v26, 3, v29')
    a('v_lshlrev_b32 v29, 10, v29')
    a('v_lshl_add_u32 v29, v30, 2, v29')
    a(f's_lshl_b32 s{sT0}, s{sH}, 17')
    a(f'v_add_u32 v{T1}, s{sT0}, v29')
    a('v_lshlrev_b32 v29, 10, v31')
    a('v_lshl_add_u32 v29, v27, 6, v29')
    a('v_lshl_add_u32 v29, v26, 2, v29')
    a(f'v_lshl_add_u32 v{T2}, v32, 3, v29')
    a(f's_cmp_eq_u32 s{sH}, 0')
    a('s_cbranch_scc0 L_rec_nm0')
    a(f's_load_dwordx2 s[72:73], s[0:1], {KA_MEM0}')
    a('s_waitcnt lgkmcnt(0)')
    srd(a, 12, 72, 73, 8192)
    a(f's_lshl_b32 s{sT0}, s{sW}, 8')
    for j in range(2):
        for i in range(4):
            a(f'buffer_load_dword v{104+4*j+i}, v{T2}, s[12:15], s{sT0} offen offset:{(64*j + 8*i)*2}')
    a(f's_lshl_b32 s{sT0}, s{sW}, 11')
    a(f's_add_u32 s{sT0}, s{sT0}, {WS_MH + 64*8192}')
    a('s_waitcnt vmcnt(0)')
    for j in range(2):
        for i in range(4): a(f'v_min_u32 v{104+4*j+i}, 0xfffffffe, v{104+4*j+i}')
        a(f'buffer_store_dwordx4 v[{104+4*j}:{107+4*j}], v{vL16}, s[{sWS}:{sWS+3}], s{sT0} offen offset:{1024*j} sc1')
    a('L_rec_nm0:')
    a('v_lshrrev_b32 v36, 2, v24')
    a('v_mov_b32 v38, 0')
    a('v_mov_b32 v39, 0x3f80')
    a('v_cmp_eq_u32 vcc, 0, v37')
    a('v_cndmask_b32 v38, v38, v39, vcc')
    a('v_mov_b32 v39, 0x3f800000')
    a('v_cmp_eq_u32 vcc, 1, v37')
    a('v_cndmask_b32 v38, v38, v39, vcc')
    for p in range(4):
        a(f'v_cmp_eq_u32 vcc, {p}, v36')
        a(f'v_cndmask_b32 v{SEL+p}, 0, v38, vcc')
    a('s_waitcnt vmcnt(0)')
    a(f's_mov_b32 s{sT1}, 0x05040100')
    a(f's_mov_b32 s{sT2}, 0x07060302')
    home = op_home(0)
    vm = Q(a, 'vmcnt', 63); lg = Q(a, 'lgkmcnt', 15)
    a('s_barrier')
    a(f's_cmp_eq_u32 s{sW}, 0')
    a('s_cbranch_scc0 L_rec_na')
    a('v_mov_b32 v38, 0\nv_mov_b32 v39, 1')
    a('s_mov_b64 exec, 1')
    a(f'global_atomic_add v38, v39, s[{sDBG}:{sDBG+1}] offset:{DB_GRP}')
    a('s_mov_b64 exec, -1')
    a('L_rec_na:')
    def put(key, regs):
        kind, idx = home[key]
        if kind == 'lds':
            lg.issue(f'ds_write_b128 v{vLW}, v[{regs}:{regs+3}] offset:{idx*2048}')
            lg.issue(f'ds_write_b128 v{vLW}, v[{regs+4}:{regs+7}] offset:{idx*2048+1024}')
        elif kind == 'a':
            for i in range(8): a(f'v_accvgpr_write_b32 a{idx+i}, v{regs+i}')
    GR = [24, 40, 56, 72]
    PT = [88, 96, 104, 112]
    jobs = [(m, j) for m in 'QKV' for j in range(8)]
    srdof = {'Q': 12, 'K': 44, 'V': 48, 'O': 52}
    a(f's_load_dwordx4 s[64:67], s[0:1], {KA_WQ}')
    a(f's_load_dwordx4 s[68:71], s[0:1], {KA_WV}')
    a(f's_load_dwordx2 s[72:73], s[0:1], {KA_MEM0}')
    a('s_waitcnt lgkmcnt(0)')
    srd(a, 12, 64, 65, 4194304); srd(a, 44, 66, 67, 4194304); srd(a, 48, 68, 69, 4194304); srd(a, 52, 70, 71, 4194304)
    def issue_job(n):
        m, j = jobs[n]; g = GR[n % 4]
        a(f's_lshl_b32 s74, s{sW}, 1\ns_add_u32 s74, s74, {j}\ns_and_b32 s74, s74, 7\ns_lshl_b32 s74, s74, 19')
        for rho in range(8):
            for b in range(2):
                row = 32 * (rho >> 2) + 8 * ((rho >> 1) & 1) + 4 * (rho & 1) + b
                a(f's_add_u32 s{sT0}, s74, {row*8192}')
                vm.issue(f'buffer_load_dword v{g+2*rho+b}, v{vVX if m == "V" else T0}, s[{srdof[m]}:{srdof[m]+3}], s{sT0} offen', tag=('w', n))
    def finish_job(n):
        m, j = jobs[n]; g = GR[n % 4]
        vm.wait(('w', n))
        for t in range(2):
            kind, idx = home[(m, j, t)]
            dst = idx if kind == 'v' else PT[(2 * n + t) % 4]
            if kind == 'lds': lg.wait_all()
            for rho in range(8):
                a(f'v_perm_b32 v{dst+rho}, v{g+2*rho+1}, v{g+2*rho}, s{sT1 if t == 0 else sT2}')
            put((m, j, t), dst)
    for n in range(3): issue_job(n)
    for n in range(len(jobs)):
        finish_job(n)
        if n + 3 < len(jobs): issue_job(n + 3)
    def issue_o(j):
        g = [24, 56][j % 2]
        a(f's_add_u32 s74, s{sW}, {j}\ns_and_b32 s75, s74, 1\ns_and_b32 s74, s74, 2\ns_lshl_b32 s74, s74, 15\ns_lshl_b32 s75, s75, 11\ns_add_u32 s74, s74, s75')
        for q in range(4):
            for b in range(2):
                row = 32 * (q >> 1) + 4 * (q & 1) + b
                a(f's_add_u32 s{sT0}, s74, {row*1024}')
                r = g + 8 * q + 4 * b
                vm.issue(f'buffer_load_dwordx4 v[{r}:{r+3}], v{T1}, s[52:55], s{sT0} offen', tag=('o', j))
    def finish_o(j):
        g = [24, 56][j % 2]
        vm.wait(('o', j))
        lg.wait_all()
        for T in range(4):
            kind, idx = home[('O', j, T)]
            dst = idx if kind == 'v' else PT[T]
            s_, p = T >> 1, T & 1
            for rho in range(8):
                q, aa = rho >> 1, rho & 1
                dw = 2 * s_ + aa
                a(f'v_perm_b32 v{dst+rho}, v{g+8*q+4+dw}, v{g+8*q+dw}, s{sT1 if p == 0 else sT2}')
            put(('O', j, T), dst)
    issue_o(0); issue_o(1)
    finish_o(0); issue_o(2); finish_o(1); issue_o(3); finish_o(2); finish_o(3)
    lg.wait_all()
    for w in range(1, 4):
        a(f's_cmp_eq_u32 s{sW}, {w}')
        a(f's_cbranch_scc1 L_rec_w{w}')
    for w in range(4):
        a(f'L_rec_w{w}:')
        emit_wave(a, w, cfg)

def emit_wave(a, w, cfg):
    stamps = False
    ST = cfg.get('store_fl', '')
    nsteps = cfg.get('nsteps', 64)
    home = op_home(w)
    vm = Q(a, 'vmcnt', 63); lg = Q(a, 'lgkmcnt', 15)
    WS = f's[{sWS}:{sWS+3}]'
    nst = [0]
    only = cfg.get('stamp_only')
    marks = cfg.get('marks')
    def stamp(): pass
    def mark(name):
        if marks and name in marks:
            i = marks.index(name)
            a(f'{"s_memrealtime" if cfg.get("rt") else "s_memtime"} s[{sST+2*i}:{sST+2*i+1}]')
    srd(a, 12, 72, 73, 8192)
    for j in range(2):
        kap = 2 * w + j
        for i in range(4):
            off = (64 * kap + 8 * i) * 2
            vm.issue(f'buffer_load_dword v{MF[j]+i}, v{T2}, s[12:15], 0 offen offset:{off}')
    a(f's_mov_b32 s{sSTEP}, 0')
    a(f's_mov_b32 s{sP0}, {WS_P}')
    a(f's_mov_b32 s{sMN}, {WS_M + 0x2000}\ns_mov_b32 s{sMC}, {WS_M}\ns_mov_b32 s{sMO}, {WS_M + 0x4000}')
    a(f's_lshl_b32 s{sKX}, s{sH}, 13')
    a(f's_add_u32 s{sKX}, s{sKX}, {WS_KX}')
    a(f's_mov_b32 s{sMH}, {WS_MH}')
    def mov64(r, n, val):
        return [f'v_mov_b64 v[{r+i}:{r+i+1}], {val}' for i in range(0, n, 2)]
    def preload():
        return [(f'ds_read_b128 v[{BUF[i]+4*hh}:{BUF[i]+4*hh+3}], v{vLW} offset:{i*2048 + 1024*hh}', 'lg') for i in range(7) for hh in range(2)]
    def run(h):
        for x in h:
            if isinstance(x, tuple): lg.issue(x[0])
            else: a(x)
    def derive():
        return [f's_add_u32 s{sP1}, s{sP0}, 4096',
                f's_lshl_b32 s{sT0}, s{sH}, 13',
                f's_add_u32 s{sT0}, s{sP0}, s{sT0}',
                f's_add_u32 s{sR0}, s{sT0}, {w*2048}',
                f's_xor_b32 s{sZ0}, s{sR0}, 0x40000',
                f's_add_u32 s{sVX}, s{sKX}, {WS_VX - WS_KX + w*2048 + (0 if cfg.get("fixkx") else SEGB)}',
                f's_add_u32 s{sWARM}, s{sKX}, {SEGB + (WS_VX - WS_KX + SEGB if w == 3 else 0)}']
    def kvcheck():
        if cfg.get('nokv'): return
        l = a.label('L_kv')
        a(f's_add_u32 s{sT0}, s{sSTEP}, 2')
        a(f's_lshr_b32 s{sT0}, s{sT0}, 4')
        a(f's_min_u32 s{sT0}, s{sT0}, 3')
        a(f's_cmp_lt_u32 s{sT0}, s{sRDY}')
        a(f's_cbranch_scc1 {l}_ok')
        a(f's_mov_b32 s{sRET}, 0')
        a(f'v_bfe_u32 v{RL[0]}, v{vL16}, 2, 4')
        a(f'{l}:')
        a(f'global_load_dword v{RL[0]+1}, v{RL[0]}, s[{sDBG}:{sDBG+1}] offset:{DB_KV} sc1')
        a('s_waitcnt vmcnt(0)')
        a(f'v_cmp_gt_u32 vcc, 0x80, v{RL[0]+1}')
        a(f's_add_u32 s{sRET}, s{sRET}, 1')
        a(f's_or_b32 s{sT1}, vcc_lo, 0x10')
        a(f's_ff1_i32_b32 s{sRDY}, s{sT1}')
        a(f's_cmp_ge_u32 s{sRET}, {SPIN}')
        a(f's_cbranch_scc1 {l}_ok')
        a(f's_cmp_ge_u32 s{sT0}, s{sRDY}')
        a(f's_cbranch_scc1 {l}')
        a(f'{l}_ok:')
    a(f's_mov_b32 s{sRDY}, 0')
    kvcheck()
    run(mov64(AQ[0], 24, 0) + preload() + derive())
    a(f's_add_u32 s{sT0}, s{sKX}, {WS_VX - WS_KX + w*2048}')
    vm.issue(f'buffer_load_dwordx4 v[{VXR[0]}:{VXR[0]+3}], v{vL16}, {WS}, s{sT0} offen sc1')
    vm.issue(f'buffer_load_dwordx4 v[{VXR[1]}:{VXR[1]+3}], v{vL16}, {WS}, s{sT0} offen offset:1024 sc1')
    if w == 0:
        lb = a.label('L_gb'); lx = a.label('L_gbx')
        a(f's_mov_b32 s{sRET}, 0')
        a(f'v_mov_b32 v{T0}, 0')
        a(f'{lb}:')
        a(f'global_load_dword v{T1}, v{T0}, s[{sDBG}:{sDBG+1}] offset:{DB_GRP} sc1')
        a('s_waitcnt vmcnt(0)')
        a(f'v_readfirstlane_b32 s{sT0}, v{T1}')
        a(f's_add_u32 s{sRET}, s{sRET}, 1')
        a(f's_cmp_ge_u32 s{sRET}, 200000')
        a(f's_cbranch_scc1 {lx}')
        a(f's_cmp_lt_u32 s{sT0}, 32')
        a(f's_cbranch_scc1 {lb}')
        a(f'{lx}:')
    vm.wait_all(); lg.wait_all()
    a(f's_mov_b32 s{sRET}, 0x7fffffff')
    a('s_barrier')
    if cfg.get('total_stamp'):
        a('s_memtime s[90:91]\ns_memrealtime s[94:95]\ns_waitcnt lgkmcnt(0)')

    def wop(key):
        kind, idx = home[key]
        if kind == 'lds':
            r = BUF[idx] if idx < 7 else BUF[idx - 7] if idx < 13 else WOL[idx - 13]
            return f'v[{r}:{r+7}]'
        return f'{kind}[{idx}:{idx+7}]'
    def smf(acc, afrag, key):
        a(f'v_smfmac_f32_16x16x64_bf16 v[{acc}:{acc+3}], v[{afrag}:{afrag+3}], {wop(key)}, v{vIDX}')
    def mf32(d, A, B, c):
        a(f'v_mfma_f32_16x16x32_bf16 v[{d}:{d+3}], v[{A}:{A+3}], v[{B}:{B+3}], {"0" if c is None else c if isinstance(c, str) else f"v[{c}:{c+3}]"}')
    def mf16(d, A, B):
        a(f'v_mfma_f32_16x16x16_bf16 v[{d}:{d+3}], v[{A}:{A+1}], v[{B}:{B+1}], v[{d}:{d+3}]')
    rls = [(i, hh) for i in range(6) for hh in range(2)]
    def reload1():
        if rls:
            i, hh = rls.pop(0)
            lg.issue(f'ds_read_b128 v[{BUF[i]+4*hh}:{BUF[i]+4*hh+3}], v{vLW} offset:{(7+i)*2048 + 1024*hh}', tag=('rl', i))
    def poll2():
        a(f'buffer_load_dwordx4 v[{MF[0]}:{MF[0]+3}], v{vL16}, {WS}, s{sPOLL} offen sc1')
        a(f'buffer_load_dwordx4 v[{MF[1]}:{MF[1]+3}], v{vL16}, {WS}, s{sPOLL} offen offset:1024 sc1')
    def warmfill(n):
        for _ in range(n): a(f'v_mov_b32 v{T2}, 0\ns_nop 3')
    R2 = cfg.get('h2_rounds', 2)

    if cfg.get('drop'):
        a_real = a
        drop = cfg['drop']
        class F:
            def __call__(self, text):
                for line in text.split('\n'):
                    if any(line.strip().startswith(d) for d in drop) and self.on: continue
                    a_real(line)
            def label(self, b='L'): return a_real.label(b)
        a = F(); a.on = True; vm.a = a; lg.a = a
    top = f'L_top_w{w}'; retry = f'L_retry_w{w}'; go = f'L_go_w{w}'
    a('.p2align 6')
    a(f'{top}:')
    if not cfg.get('nohop'): a(f's_waitcnt vmcnt({2*(R2-1)})')
    a(f'{top}_nw:')
    mark('top')
    m0, m1 = MF[0], MF[1]
    ACC = {'Q': AQ, 'K': AK, 'V': AV}
    def op(m, j, t): smf(ACC[m][t], MF[j], (m, j, t))
    a(f'v_max3_u32 v{T0}, v{m0}, v{m0+1}, v{m0+2}')
    a(f'v_max3_u32 v{T1}, v{m0+3}, v{m1}, v{m1+1}')
    op('Q', 0, 0)
    lg.issue(f'ds_write_b128 v{vL16}, v[{MF[0]}:{MF[0]+3}] offset:{LDS_MS + 2048*w}', tag='mw')
    a(f'v_max3_u32 v{T0}, v{T0}, v{m1+2}, v{m1+3}')
    op('Q', 0, 1)
    lg.issue(f'ds_write_b128 v{vL16}, v[{MF[1]}:{MF[1]+3}] offset:{LDS_MS + 2048*w + 1024}', tag='mw')
    a(f'v_max_u32 v{T0}, v{T0}, v{T1}')
    a(f'v_cmp_eq_u32 vcc, -1, v{T0}')
    op('Q', 1, 0)
    op('Q', 1, 1)
    if not cfg.get('nohop'): a(f's_cbranch_vccnz {retry}')
    a(f'{go}:')
    if marks:
        a(f's_cmp_eq_u32 s{sSTEP}, {cfg.get("dumpstep", 41)}')
        a(f's_cbranch_scc1 L_dump_w{w}')
        a(f'L_nd_w{w}:')
        mark('go')
    LDF = cfg.get('ldf', '')
    VMI = {
        'KX0': (f'buffer_load_dwordx4 v[{KXR[0]}:{KXR[0]+3}], v{vKX}, {WS}, s{sKX} offen sc1 {LDF}', 'kx'),
        'KX1': (f'buffer_load_dwordx4 v[{KXR[1]}:{KXR[1]+3}], v{vKX}, {WS}, s{sKX} offen offset:1024 sc1 {LDF}', 'kx'),
        'VX0': (f'buffer_load_dwordx4 v[{VXR[0]}:{VXR[0]+3}], v{vL16}, {WS}, s{sVX} offen sc1 {LDF}', 'vx'),
        'VX1': (f'buffer_load_dwordx4 v[{VXR[1]}:{VXR[1]+3}], v{vL16}, {WS}, s{sVX} offen offset:1024 sc1 {LDF}', 'vx'),
        'ZM': (f'buffer_store_dword v{T1}, v{vPUB}, {WS}, s{sMO} offen {ST}', 'z'),
        'WARM': (f'buffer_load_dword v{T2}, {WS}, s{sWARM} offen sc1 lds', None),
        'MH': (f'buffer_store_dword v{RACC+2}, v{vPUB}, {WS}, s{sMH} offen sc1', None),
    }
    for i in range(2): VMI[f'Z{i}'] = (f'buffer_store_dword v{T1}, v{vL16}, {WS}, s{sZ0} offen offset:{1024*i} {ST}', 'z')
    def vmi(name):
        if name == 'WARM' and (cfg.get('nowarm') or w < 2): return
        vm.issue(VMI[name][0], tag=VMI[name][1])
    vmi('KX0')
    op('K', 0, 0)
    if w >= 2: a(f'v_lshlrev_b32 v{T2}, 3, v{vL16}')
    op('K', 0, 1); vmi('KX1')
    vops = [(j, t) for j in range(8) for t in range(2)]
    def vop(n=1):
        for _ in range(n):
            j, t = vops.pop(0); op('V', j, t)
    for _ in range(cfg.get('va0', 1)): vop()
    vmi('MH')
    lg.wait('mw')
    mark('preB1')
    a('s_barrier')
    mark('B1')
    def mfread(j): lg.issue(f'ds_read_b128 v[{MF[j]}:{MF[j]+3}], v{vL16} offset:{LDS_MS + ((2*w+j)&7)*1024}', tag=('mf', j))
    mfread(2)
    op('K', 1, 0); mfread(3)
    vmi('WARM')
    op('K', 1, 1); mfread(4); a(f'v_mov_b32 v{T1}, -1')
    vop(); mfread(5)
    vop(); mfread(6)
    for _ in range(cfg.get('va', 0)): vop()
    mark('Aend')
    zs = ['Z0', 'Z1', 'ZM']
    for j in range(2, 8):
        lg.wait(('mf', j))
        op('Q', j, 0)
        if j == 2: mfread(7)
        else: reload1()
        if j in (3, 5, 7): vmi(zs.pop(0))
        op('Q', j, 1)
        reload1()
    mark('Qend')
    kops = [(j, t) for j in range(2, 8) for t in range(2)]
    def kop():
        j, t = kops.pop(0); op('K', j, t)
    q0, q1 = AQ
    lg.wait(('rl', 2))
    kop(); reload1(); assert not rls
    kop(); a('s_nop 0')
    a(f'v_permlane32_swap_b32 v{q0}, v{q0+2}')
    a(f'v_permlane32_swap_b32 v{q0+1}, v{q0+3}')
    kop(); lg.wait(('rl', 4))
    a(f'v_permlane32_swap_b32 v{q1}, v{q1+2}')
    a(f'v_permlane32_swap_b32 v{q1+1}, v{q1+3}')
    kop()
    a(f'v_add_f32 v{q0}, v{q0}, v{q0+2}')
    a(f'v_add_f32 v{q1}, v{q1}, v{q1+2}')
    a(f'v_cvt_pk_bf16_f32 v{T0}, v{q0}, v{q1}')
    kop(); lg.wait(('rl', 5))
    lg.issue(f'ds_write_b32 v{vKW}, v{T0} offset:{LDS_Q}', tag='qw')
    a(f'v_add_f32 v{q0+1}, v{q0+1}, v{q0+3}')
    a(f'v_add_f32 v{q1+1}, v{q1+1}, v{q1+3}')
    a(f'v_cvt_pk_bf16_f32 v{T1}, v{q0+1}, v{q1+1}')
    mark('qw')
    kop()
    lg.issue(f'ds_write_b32 v{vKW}, v{T1} offset:{LDS_Q + IO1}', tag='qw')
    for i in range(cfg.get('k1', 4)):
        kop()
    lg.wait('qw')
    mark('preB2')
    a('s_barrier')
    mark('B2')
    k0, k1 = AK
    rd = [(f'ds_read_b128 v[{QD[k]}:{QD[k]+3}], v{vQD} offset:{64*k}', ('qd', k)) for k in range(2)]
    rd += [(f'ds_read_b128 v[{QF[k]}:{QF[k]+3}], v{vQR} offset:{64*k}', ('qf', k)) for k in range(4)]
    lg.issue(*rd.pop(0))
    while kops:
        kop(); lg.issue(*rd.pop(0))
    for _ in range(cfg.get('v0', 2)):
        vop(); lg.issue(*rd.pop(0))
    vm.wait('kx'); lg.wait(('qd', 1))
    mark('sx')
    mf32(SX, KXR[0], QD[0], '0.5')
    a(f'v_cvt_pk_bf16_f32 v{k0}, v{k0}, v{k1}')
    a(f'v_cvt_pk_bf16_f32 v{k0+1}, v{k0+1}, v{k1+1}')
    mf32(SX, KXR[1], QD[1], SX)
    lg.issue(f'ds_write2_b32 v{vKW}, v{k0}, v{k0+1} offset0:0 offset1:80', tag='kw')
    a(f'v_cvt_pk_bf16_f32 v{k0+2}, v{k0+2}, v{k1+2}')
    a(f'v_cvt_pk_bf16_f32 v{k0+3}, v{k0+3}, v{k1+3}')
    vop()
    lg.issue(f'ds_write2_b32 v{vKW}, v{k0+2}, v{k0+3} offset0:160 offset1:240', tag='kw')
    while rd: lg.issue(*rd.pop(0))
    vop(); a('s_nop 0')
    a(f'v_permlane32_swap_b32 v{SX}, v{SX+2}')
    vop()
    a(f'v_permlane32_swap_b32 v{SX+1}, v{SX+3}')
    vop()
    a(f'v_add_f32_dpp v{SX}, v{SX+2}, v{SX} row_ror:8 row_mask:0xf bank_mask:0xf')
    a(f'v_add_f32_dpp v{SX+1}, v{SX+3}, v{SX+1} row_ror:8 row_mask:0xf bank_mask:0xf')
    a(f'v_exp_f32 v{SX}, v{SX}')
    lg.wait('kw')
    mark('preB3')
    a('s_barrier')
    mark('B3')
    kf = [(f'ds_read_b128 v[{KF[k]}:{KF[k]+3}], v{vKR} offset:{64*k}', ('kf', k)) for k in range(4)]
    vop(); lg.issue(*kf[0])
    a(f'v_exp_f32 v{SX+1}, v{SX+1}')
    vop(); lg.issue(*kf[1])
    a(f'v_cvt_pk_bf16_f32 v{SX}, v{SX}, v{SX+1}')
    vop(); lg.issue(*kf[2])
    lg.issue(f'ds_write_b32 v{vPW}, v{SX}', tag='pw')
    lg.issue(*kf[3])
    a(f'v_mov_b32 v{T0}, 0')
    mark('pw')
    wz = mov64(WACC[0], 8, 0) + mov64(WACC[2], 4, 0) + mov64(WACC[3], 4, 0)
    wz_ = list(wz)
    for k in range(4):
        lg.wait(('kf', k))
        mf32(SM, KF[k], QF[k], None if k == 0 else SM)
        if k < 3: a(wz_.pop(0))
    mark('smm')
    wol = [f'ds_read_b128 v[{WOL[i]+4*hh}:{WOL[i]+4*hh+3}], v{vLW} offset:{(13+i)*2048 + 1024*hh}' for i in range(5) for hh in range(2)]
    wol_ = list(wol)
    lg.wait('pw')
    a('s_barrier')
    vop()
    lg.issue(f'ds_read_b128 v[{PX}:{PX+3}], v{vPI}', tag='px')
    a(wz_.pop(0))
    vop()
    a('s_nop 1')
    a(f'v_permlane32_swap_b32 v{SM}, v{SM+2}')
    vop(); lg.issue(wol_.pop(0), tag='wol')
    a(f'v_permlane32_swap_b32 v{SM+1}, v{SM+3}')
    while vops:
        vop(); lg.issue(wol_.pop(0), tag='wol')
    a(f'v_add_f32 v{SM}, v{SM}, v{SM+2}')
    a(f'v_add_f32 v{SM+1}, v{SM+1}, v{SM+3}')
    mark('Vend')
    lg.wait('px')
    mf32(LL, ONES, PX, None)
    a(f'v_mul_f32 v{SM}, s{sC}, v{SM}')
    a(f'v_mul_f32 v{SM+1}, s{sC}, v{SM+1}')
    mf32(O0, VXR[0], PX, None)
    a(f'v_exp_f32 v{SM+2}, v{SM}')
    mf32(O1, VXR[1], PX, None)
    a(f'v_exp_f32 v{SM+3}, v{SM+1}')
    v0_, v1_ = AV
    a(f'v_cvt_pk_bf16_f32 v{VMF}, v{v0_}, v{v0_+1}')
    a(f'v_cvt_pk_bf16_f32 v{SM}, v{SM+2}, v{SM+3}')
    a(f'v_cvt_pk_bf16_f32 v{SM+1}, v{SM+2}, v{SM+3}')
    a(f'v_cvt_pk_bf16_f32 v{VMF+1}, v{v0_+2}, v{v0_+3}')
    a(f'v_cvt_pk_bf16_f32 v{VMF+2}, v{v1_}, v{v1_+1}')
    a(f'v_permlane32_swap_b32 v{SM}, v{SM+1}')
    a(f'v_cvt_pk_bf16_f32 v{VMF+3}, v{v1_+2}, v{v1_+3}')
    a('s_nop 0')
    mf16(LL, ONES, SM)
    a(wz_.pop(0)); a(wz_.pop(0))
    mf16(O0, VMF, SM)
    a(wz_.pop(0)); a(wz_.pop(0))
    mf16(O1, VMF + 2, SM)
    lg.issue(wol_.pop(0), tag='wol')
    nwol_early = 10 - len(wol_)
    fb = f'L_fb_w{w}'; fbr = f'L_fbr_w{w}'
    a(f'v_rcp_f32 v{T0}, v{LL}')
    a(f'v_add_u32 v{T2}, {(-0x21800000) & 0xffffffff}, v{LL}')
    a(f'v_cmp_lt_u32 vcc, s{sRNG}, v{T2}')
    a(f'{fbr}:')
    for r in range(4): a(f'v_mul_f32 v{O0+r}, v{O0+r}, v{T0}')
    for r in (0, 2):
        a(f'v_pk_mul_f32 v[{O1+r}:{O1+r+1}], v[{O1+r}:{O1+r+1}], v[{T0}:{T0+1}] op_sel_hi:[1,0]')
    for r in range(4): a(f'v_cvt_pk_bf16_f32 v{OF[0]+r}, v{O0+r}, v{O1+r}')
    if not cfg.get('nohop'): a(f's_cbranch_vccnz {fb}')
    mark('oready')
    lg.issue(f'ds_write_b128 v{vL16}, v[{OF[0]}:{OF[0]+3}] offset:{LDS_OI + 1024*w}', tag='ow')
    def wo(j, T): smf(WACC[T], OF[j], ('O', j, T))
    za = mov64(AV[0], 8, 0)
    assert not wz_
    wo(0, 0); vmi('VX0')
    a(za.pop(0))
    wo(0, 1); a(za.pop(0))
    wo(0, 2); a(za.pop(0))
    lg.wait('ow')
    mark('preB4')
    a('s_barrier')
    mark('B4')
    for j in range(1, 4):
        lg.issue(f'ds_read_b128 v[{OF[j]}:{OF[j]+3}], v{vL16} offset:{LDS_OI + 1024*((w+j)&3)}', tag=('of', j))
        if j == 1: a(za.pop(0))
    wo(0, 3); vmi('VX1')
    zq = mov64(AQ[0], 8, 0)
    lg.issue(wol_.pop(0), tag=('wol', len(wol_)))
    a(zq.pop(0))
    a(f's_add_u32 s{sSTEP}, s{sSTEP}, 1')
    FL = cfg.get('flags', True) and not cfg.get('nohop')
    fpos = cfg.get('fpos', 0)
    if FL and w == 1:
        a(f'v_mov_b32 v{T0}, s{sSTEP}')
        a(f'v_lshlrev_b32 v{T2}, 4, v{vL16}')
    if FL and w == 0:
        a(f'v_mov_b32 v{T1}, 0')
        a(f'v_bfe_u32 v{T2}, v{vL16}, 2, 7')
    def flag(i):
        if FL and i == fpos and w == 1:
            a('s_mov_b32 exec_hi, 0')
            vm.issue(f'buffer_store_dword v{T0}, v{T2}, {WS}, s{sFW} offen {ST}')
            a('s_mov_b32 exec_hi, -1')
    flag(0)
    for j in range(1, 4):
        lg.wait(('of', j))
        wo(j, 0)
        if wol_: lg.issue(wol_.pop(0), tag=('wol', len(wol_)))
        flag(2 * j - 1)
        wo(j, 1)
        if wol_: lg.issue(wol_.pop(0), tag=('wol', len(wol_)))
        flag(2 * j)
    assert not wol_
    adv = [f's_add_u32 s{sPOLL}, s{sMN}, {w*2048}',
           f's_add_u32 s{sMH}, s{sMH}, 8192',
           f's_mov_b32 s{sT0}, s{sMO}', f's_mov_b32 s{sMO}, s{sMC}', f's_mov_b32 s{sMC}, s{sMN}', f's_mov_b32 s{sMN}, s{sT0}']
    if not cfg.get('fixkx'): adv.append(f's_add_u32 s{sKX}, s{sKX}, {SEGB}')
    wo(1, 2); a(adv.pop(0)); a(adv.pop(0)); a(adv.pop(0))
    wo(1, 3); a(adv.pop(0)); lg.wait(('wol', 4))
    a(f'v_cvt_pk_bf16_f32 v{STD[0]}, v{WACC[0]}, v{WACC[1]}')
    wo(2, 2)
    if FL and w == 0 and cfg.get('pp', 2) >= 3: a(f'buffer_load_dword v{T1}, v{T2}, {WS}, s{sFR} offen sc1')
    for r in range(1, 4): a(f'v_cvt_pk_bf16_f32 v{STD[0]+r}, v{WACC[0]+r}, v{WACC[1]+r}')
    wo(2, 3)
    mark('st0')
    vm.issue(f'buffer_store_dwordx4 v[{STD[0]}:{STD[0]+3}], v{vPST}, {WS}, s{sP0} offen {ST}')
    lg.wait_all()
    wo(3, 2)
    if FL and w == 0 and cfg.get('pp', 2) >= 2: a(f'buffer_load_dword v{T1}, v{T2}, {WS}, s{sFR} offen sc1')
    wo(3, 3)
    run(adv); run(zq); zq = []
    if FL and w == 0 and cfg.get('pp', 2) >= 1: a(f'buffer_load_dword v{T1}, v{T2}, {WS}, s{sFR} offen sc1')
    for r in range(4): a(f'v_cvt_pk_bf16_f32 v{STD[1]+r}, v{WACC[2]+r}, v{WACC[3]+r}')
    vm.issue(f'buffer_store_dwordx4 v[{STD[1]}:{STD[1]+3}], v{vPST}, {WS}, s{sP1} offen {ST}')
    mark('st1')
    hs = [f's_mov_b32 s{sRP}, s{sR0}', f's_xor_b32 s{sP0}, s{sP0}, 0x40000'] + derive() + mov64(AK[0], 8, 0) + preload()
    def ld1(l): a(f'buffer_load_dwordx4 v[{RL[l]}:{RL[l]+3}], v{vL16}, {WS}, s{sRP} offen offset:{1024*l} sc1')
    def ld2(l): a(f'buffer_load_dwordx4 v[{MF[l]}:{MF[l]+3}], v{vL16}, {WS}, s{sPOLL} offen offset:{1024*l} sc1')
    def delay(cyc): warmfill(max(0, cyc) // 20)
    kvcheck()
    lr = a.label('L_red')
    if cfg.get('nohop'):
        a('s_barrier')
        run(hs); lg.wait_all()
        a(f's_cmp_eq_u32 s{sSTEP}, {nsteps-1}')
        a(f's_cbranch_scc1 L_rec_done_w{w}')
    else:
        F2 = cfg.get('flags2', False)
        FR = MF[6]
        def probe(): a(f'buffer_load_dword v{T1}, v{T2}, {WS}, s{sFR} offen sc1')
        def probe2(): a(f'buffer_load_dword v{FR}, v{T2}, {WS}, s{sFR} offen offset:128 sc1')
        def waitflags(reg, pr, tag):
            lf = a.label('L_fl')
            a(f's_mov_b32 s{sRET}, 0')
            a(f'{lf}:')
            a(f'v_cmp_gt_u32 vcc, s{sSTEP}, v{reg}')
            pr()
            a(f's_add_u32 s{sRET}, s{sRET}, 1')
            a(f's_cmp_ge_u32 s{sRET}, 30000')
            a(f's_cbranch_scc1 {lf}_x')
            a(f's_cbranch_vccnz {lf}')
            a(f'{lf}_x:')
            if marks and tag: a(f's_mov_b32 s83, s{sRET}')
        if w == 0:
            run(hs[:1]); hs = hs[1:]
            a(f'v_mov_b32 v{FR}, 0')
            waitflags(T1, probe, False)
        else:
            n1 = cfg.get('hs1', 14)
            run(hs[:n1]); hs = hs[n1:]
        a('s_barrier')
        mark('fl')
        if w >= 2:
            n1 = cfg.get('hs1b', 4)
            run(hs[:n1]); hs = hs[n1:]
        ld1(0); ld1(1)
        extra = 0
        if w == 1 and F2:
            n2 = cfg.get('f2pos', 10)
            run(hs[:n2]); hs = hs[n2:]
            a('s_mov_b32 exec_hi, 0')
            a(f'buffer_store_dword v{T0}, v{T2}, {WS}, s{sFW} offen offset:128 {ST}')
            a('s_mov_b32 exec_hi, -1')
            extra = 1
        n3 = 0 if F2 else cfg.get('hs3', 4)
        run(hs[:len(hs) - n3]); hs = hs[len(hs) - n3:]
        if w == 0 and F2:
            probe2(); extra += 1
        a(f's_mov_b32 s{sRET}, 0')
        mark('h1spin')
        a(f's_waitcnt vmcnt({extra})')
        a(f'v_max_u32 v{T0}, v{RL[0]}, v{RL[1]}')
        a(f'v_cmp_eq_u32 vcc, -1, v{T0}')
        a(f'{lr}_m:')
        mf32(RACC, SEL, RL[0], None)
        if w == 0 and F2: probe2()
        mf32(RACC, SEL, RL[1], RACC)
        a(f's_cmp_eq_u32 s{sSTEP}, {nsteps-1}')
        a('s_nop 2')
        a(f's_cbranch_vccnz {lr}_e')
        a(f'v_add_f32_dpp v{RACC}, v{RACC}, v{RACC} row_ror:4 row_mask:0xf bank_mask:0xf')
        a(f'v_add_f32_dpp v{RACC+1}, v{RACC+1}, v{RACC+1} row_ror:4 row_mask:0xf bank_mask:0xf')
        a(f'v_add_f32_dpp v{RACC}, v{RACC}, v{RACC} row_ror:8 row_mask:0xf bank_mask:0xf')
        a(f'v_add_f32_dpp v{RACC+1}, v{RACC+1}, v{RACC+1} row_ror:8 row_mask:0xf bank_mask:0xf')
        a(f'v_cvt_pk_bf16_f32 v{RACC+2}, v{RACC}, v{RACC+1}')
        a(f'v_min_u32 v{RACC+2}, 0xfffffffe, v{RACC+2}')
        a(f'buffer_store_dword v{RACC+2}, v{vPUB}, {WS}, s{sMC} offen {ST}')
        mark('pub')
        a(f's_cbranch_scc1 L_rec_done_w{w}')
        if marks: a(f's_mov_b32 s{sFLAG}, s{sRET}')
        a(f's_mov_b32 s{sRET}, 0')
        run(hs)
        if w == 0 and F2:
            waitflags(FR, probe2, True)
            a(f's_mov_b32 s{sRET}, 0')
        a('s_barrier')
        mark('fl2')
        delay(cfg.get('h2_d', 80))
        ld2(0); ld2(1)
        for _ in range(R2 - 1):
            delay(cfg.get('h2_gap', 140)); ld2(0); ld2(1)
        lg.wait_all()
    mark('end')
    a(f's_branch {top}')
    if cfg.get('drop'): a.on = False
    def spin(lbl, chk, ld, done, pre=[]):
        a(f'{lbl}_e:')
        a('s_mov_b64 exec, vcc')
        ld(0); ld(1)
        a('s_mov_b64 exec, -1')
        for x in pre: a(x)
        a(f'{lbl}:')
        chk()
        a(f's_add_u32 s{sRET}, s{sRET}, 1')
        a(f's_cmp_ge_u32 s{sRET}, 30000')
        a(f's_cbranch_scc1 {lbl}_to')
        a(f's_or_b64 s[{sMK+2}:{sMK+3}], vcc, s[{sMK}:{sMK+1}]')
        a(f's_cbranch_scc0 {done}')
        a('s_mov_b64 exec, vcc')
        ld(0)
        a(f's_mov_b64 exec, s[{sMK}:{sMK+1}]')
        ld(1)
        a('s_mov_b64 exec, -1')
        delay(cfg.get('sp_d', 0))
        a(f's_branch {lbl}')
        a(f'{lbl}_to:')
        a('s_mov_b64 vcc, 0')
        a(f's_branch {done}')
    def chk1():
        a(f'v_cmp_eq_u32 vcc, -1, v{RL[0]}')
        a(f'v_cmp_eq_u32 s[{sMK}:{sMK+1}], -1, v{RL[1]}')
    def chk2():
        a(f'v_max3_u32 v{T0}, v{m0}, v{m0+1}, v{m0+2}')
        a(f'v_max3_u32 v{T1}, v{m1}, v{m1+1}, v{m1+2}')
        a(f'v_max_u32 v{T0}, v{T0}, v{m0+3}')
        a(f'v_max_u32 v{T1}, v{T1}, v{m1+3}')
        a(f'v_cmp_eq_u32 vcc, -1, v{T0}')
        a(f'v_cmp_eq_u32 s[{sMK}:{sMK+1}], -1, v{T1}')
    if not cfg.get('nohop'): spin(lr, chk1, ld1, f'{lr}_m')
    a(f'{retry}:')
    a(f's_cmp_ge_u32 s{sRET}, 30000')
    a(f's_cbranch_scc1 {go}')
    spin(f'{retry}_l', chk2, ld2, f'{top}_nw', pre=mov64(AQ[0], 8, 0))
    if marks:
        a(f'L_dump_w{w}:')
        a('s_waitcnt lgkmcnt(0)')
        a(f's_lshl_b32 s{sT0}, s{sH}, 9')
        a(f's_add_u32 s{sT0}, s{sT0}, {WS_STAMP + w*128}')
        a(f'v_mov_b32 v{T0}, 0')
        for i in range(len(marks)):
            a(f'v_mov_b32 v{T1}, s{sST+2*i}')
            a(f'buffer_store_dword v{T1}, v{T0}, {WS}, s{sT0} offen offset:{16+4*i}')
        a(f'v_mov_b32 v{T1}, s83\nbuffer_store_dword v{T1}, v{T0}, {WS}, s{sT0} offen offset:108')
        a(f'v_mov_b32 v{T1}, s{sFLAG}\nbuffer_store_dword v{T1}, v{T0}, {WS}, s{sT0} offen offset:120')
        a(f'v_mov_b32 v{T1}, s{sRET}\nbuffer_store_dword v{T1}, v{T0}, {WS}, s{sT0} offen offset:124')
        a('s_memrealtime s[88:89]\ns_waitcnt lgkmcnt(0)')
        a(f'L_cal_w{w}:')
        a('s_memrealtime s[86:87]\ns_memtime s[84:85]\ns_waitcnt lgkmcnt(0)')
        a(f's_cmp_eq_u32 s86, s88\ns_cbranch_scc1 L_cal_w{w}')
        a(f'v_mov_b32 v{T1}, s86\nbuffer_store_dword v{T1}, v{T0}, {WS}, s{sT0} offen offset:112')
        a(f'v_mov_b32 v{T1}, s84\nbuffer_store_dword v{T1}, v{T0}, {WS}, s{sT0} offen offset:116')
        a(f's_branch L_nd_w{w}')
    vm.reset(); lg.reset()
    a(f'{fb}:')
    a('s_waitcnt lgkmcnt(0)')
    a(f's_add_u32 s{sT0}, s{sKX}, 4096')
    for kt in range(2):
        for k in range(4):
            r = MF[4 * kt + k]
            a(f'buffer_load_dwordx4 v[{r}:{r+3}], v{vL16}, {WS}, s{sKX if kt == 0 else sT0} offen offset:{k*1024} sc1')
    for k in range(4):
        a(f'ds_read_b128 v[{QF[k]}:{QF[k]+3}], v{vQR} offset:{64*k}')
        a(f'ds_read_b128 v[{KF[k]}:{KF[k]+3}], v{vKR} offset:{64*k}')
    a('s_waitcnt vmcnt(0) lgkmcnt(0)')
    S0, S1 = 56, 60
    for k in range(4):
        mf32(S0, MF[k], QF[k], None if k == 0 else S0)
        mf32(S1, MF[4 + k], QF[k], None if k == 0 else S1)
        mf32(SM, KF[k], QF[k], None if k == 0 else SM)
    a(f'v_permlane32_swap_b32 v{SM}, v{SM+2}\nv_permlane32_swap_b32 v{SM+1}, v{SM+3}')
    a(f'v_add_f32 v{SM}, v{SM}, v{SM+2}\nv_add_f32 v{SM+1}, v{SM+1}, v{SM+3}')
    a(f'v_mul_f32 v{SM}, s{sC}, v{SM}\nv_mul_f32 v{SM+1}, s{sC}, v{SM+1}')
    alls = [S0 + r for r in range(4)] + [S1 + r for r in range(4)] + [SM, SM + 1]
    a(f'v_max3_f32 v{T0}, v{alls[0]}, v{alls[1]}, v{alls[2]}')
    for i in range(3, 9, 2): a(f'v_max3_f32 v{T0}, v{T0}, v{alls[i]}, v{alls[i+1]}')
    a(f'v_max_f32 v{T0}, v{T0}, v{alls[9]}')
    for sw in ('16', '32'):
        a(f'v_mov_b32 v{T1}, v{T0}')
        a(f'v_permlane{sw}_swap_b32 v{T0}, v{T1}')
        a(f'v_max_f32 v{T0}, v{T0}, v{T1}')
    a(f'v_add_f32 v{T1}, -1.0, v{T0}')
    for r in alls:
        a(f'v_sub_f32 v{r}, v{r}, v{T0 if r in (SM, SM+1) else T1}')
        a(f'v_exp_f32 v{r}, v{r}')
    a(f'v_cvt_pk_bf16_f32 v{PX}, v{S0}, v{S0+1}\nv_cvt_pk_bf16_f32 v{PX+1}, v{S0+2}, v{S0+3}')
    a(f'v_cvt_pk_bf16_f32 v{PX+2}, v{S1}, v{S1+1}\nv_cvt_pk_bf16_f32 v{PX+3}, v{S1+2}, v{S1+3}')
    a(f'v_cvt_pk_bf16_f32 v{SM}, v{SM}, v{SM+1}\nv_mov_b32 v{SM+1}, v{SM}')
    a(f'v_permlane32_swap_b32 v{SM}, v{SM+1}')
    mf32(LL, ONES, PX, None); mf32(O0, VXR[0], PX, None); mf32(O1, VXR[1], PX, None)
    mf16(LL, ONES, SM); mf16(O0, VMF, SM); mf16(O1, VMF + 2, SM)
    for x in wol[:nwol_early]: a(x)
    for x in wz: a(x)
    a('s_mov_b64 vcc, 0')
    a(f'v_rcp_f32 v{T0}, v{LL}')
    a('s_waitcnt lgkmcnt(0)')
    a('s_nop 7')
    a(f's_branch {fbr}')
    a(f'L_rec_done_w{w}:')
    a(VMI['MH'][0])
    a('s_waitcnt vmcnt(0)')
    if cfg.get('total_stamp') or stamps:
        a('s_memtime s[92:93]\ns_memrealtime s[96:97]\ns_waitcnt lgkmcnt(0)')
        a('s_sub_u32 s92, s92, s90\ns_sub_u32 s96, s96, s94')
        a(f's_lshl_b32 s{sT0}, s{sH}, 9')
        a(f's_add_u32 s{sT0}, s{sT0}, {WS_STAMP + w*128}')
        a('v_mov_b32 v24, 0')
        a('s_mov_b64 exec, 1')
        vals = [92, 96, 94, 98] + ([sST + i for i in range(20)] if stamps else [])
        for i, s in enumerate(vals):
            a(f'v_mov_b32 v25, s{s}')
            a(f'buffer_store_dword v25, v24, {WS}, s{sT0} offen offset:{4*i}')
        a('s_waitcnt vmcnt(0)')
    a('s_endpgm')
```

```python
from common import *
from gemm import gWS, gDBG, gW, gT0, gT1, gT2, gT3
from battn import wait_counter
from rec import IP, IG

xH, xS, xN, xPB, xFB, xC = 62, 63, 64, 65, 66, 67
xMH, xQ, xK, xV, xPW, xPR, xRET, xOB = 68, 69, 70, 71, 72, 73, 74, 75
oSRD = 20
vL16, vKW, vKR, vIDX, vRD, vOUT, vWL, vFL = 1, 2, 3, 4, 5, 6, 7, 8
T0, T1 = 10, 11
ONES, SEL, BIAS = 12, 16, 20
MF = [28 + 4 * i for i in range(8)]
AK = [60, 64]; AV = [68, 72]
QF = [76 + 4 * i for i in range(4)]
KX = [92 + 4 * i for i in range(8)]
VX = [124 + 4 * i for i in range(4)]
KF = [140 + 4 * i for i in range(4)]
VM = [156, 160]
S0, S1, SM, PX, LL = 164, 168, 172, 176, 180
OA = [184 + 4 * i for i in range(4)]
OF = [140 + 4 * i for i in range(8)]
WACC = 28
WF = [172 + 4 * i for i in range(6)]
STD = [92 + 4 * i for i in range(8)]
RL = [200 + 4 * i for i in range(8)]
RACC = 232
L_K, L_V, L_O, L_W = 0, 5184, 9280, 32768
NX = 3

def emit_xattn(a, cfg, sX, sT):
    WS = f's[{gWS}:{gWS+3}]'
    vm = Q(a, 'vmcnt', 63); lg = Q(a, 'lgkmcnt', 15)
    a(f's_mov_b32 s{xH}, s{sT}')
    a(f's_load_dwordx4 s[76:79], s[0:1], {KA_WK}')
    a(f's_load_dwordx2 s[80:81], s[0:1], {KA_WO}')
    a(f's_load_dwordx2 s[82:83], s[0:1], {KA_OUT}')
    a('v_and_b32 v28, 63, v0')
    a('v_and_b32 v29, 15, v28')
    a('v_lshrrev_b32 v30, 4, v28')
    a('v_and_b32 v31, 1, v30')
    a('v_lshrrev_b32 v32, 1, v30')
    a('v_lshrrev_b32 v33, 2, v29')
    a('v_and_b32 v34, 3, v29')
    a(f'v_lshlrev_b32 v{vL16}, 4, v28')
    a('v_lshlrev_b32 v35, 2, v29')
    a(f's_lshl_b32 s{gT0}, s{gW}, 6')
    a(f'v_add_u32 v35, s{gT0}, v35')
    a(f'v_mul_u32_u24 v36, {IG}, v30')
    a(f'v_add_u32 v{vKW}, v36, v35')
    a(f'v_mul_u32_u24 v36, {IG}, v33')
    a(f'v_mul_u32_u24 v37, {IP}, v34')
    a('v_add_u32 v36, v36, v37')
    a(f'v_lshl_add_u32 v{vKR}, v30, 4, v36')
    a(f'v_mov_b32 v{vIDX}, 0x4444\nv_mov_b32 v36, 0xeeee')
    a('v_cmp_lt_u32 vcc, 7, v29')
    a(f'v_cndmask_b32 v{vIDX}, v{vIDX}, v36, vcc')
    a('v_lshlrev_b32 v36, 4, v29')
    a('v_lshl_add_u32 v36, v30, 10, v36')
    a(f's_lshl_b32 s{gT0}, s{gW}, 8')
    a(f'v_add_u32 v{vRD}, s{gT0}, v36')
    a('v_lshl_add_u32 v38, v33, 3, v34')
    a('v_lshlrev_b32 v36, 11, v38')
    a('v_lshl_add_u32 v36, v30, 2, v36')
    a(f's_lshr_b32 s{gT0}, s{xH}, 3\ns_lshl_b32 s{gT0}, s{gT0}, 8')
    a(f's_and_b32 s{gT1}, s{xH}, 4\ns_lshl_b32 s{gT1}, s{gT1}, 11\ns_add_u32 s{gT0}, s{gT0}, s{gT1}')
    a(f's_and_b32 s{gT1}, s{xH}, 3\ns_lshl_b32 s{gT1}, s{gT1}, 4\ns_add_u32 s{gT0}, s{gT0}, s{gT1}')
    a(f's_lshl_b32 s{gT1}, s{gW}, 6\ns_add_u32 s{gT0}, s{gT0}, s{gT1}')
    a(f'v_add_u32 v{vOUT}, s{gT0}, v36')
    a(f's_lshl_b32 s{gT0}, s{gW}, 15\ns_add_u32 s{gT0}, s{gT0}, {L_W}')
    a(f'v_add_u32 v{vWL}, s{gT0}, v{vL16}')
    a(f'v_bfe_u32 v{vFL}, v{vL16}, 2, 7')
    for i in range(4): a(f'v_mov_b32 v{ONES+i}, 0x3f003f00')
    a('v_mov_b32 v36, 0\nv_mov_b32 v37, 0x3f80')
    a('v_cmp_eq_u32 vcc, 0, v34\nv_cndmask_b32 v36, v36, v37, vcc')
    a('v_mov_b32 v37, 0x3f800000')
    a('v_cmp_eq_u32 vcc, 1, v34\nv_cndmask_b32 v36, v36, v37, vcc')
    for p in range(4):
        a(f'v_cmp_eq_u32 vcc, {p}, v33\nv_cndmask_b32 v{SEL+p}, 0, v36, vcc')
    a(f's_and_b32 s{gT0}, s{gW}, 1\ns_lshl_b32 s{gT0}, s{gT0}, 2')
    a(f'v_add_u32 v38, s{gT0}, v38')
    a('v_lshlrev_b32 v36, 3, v30')
    a('v_sub_u32 v38, v38, v36')
    a('v_mov_b32 v36, 0xf149f2ca\nv_mov_b32 v37, 1.0')
    for i in range(8):
        a(f'v_cmp_le_i32 vcc, {i}, v38\nv_cndmask_b32 v{BIAS+i}, v36, v37, vcc')
    a(f's_mov_b32 s{xC}, 0x3e0293ee')
    a('v_lshlrev_b32 v36, 1, v32\nv_lshl_add_u32 v36, v31, 4, v36\nv_lshlrev_b32 v36, 13, v36')
    a(f's_lshl_b32 s{gT0}, s{xH}, 8')
    a(f'v_add_u32 v36, s{gT0}, v36')
    a('v_add_u32 v240, v36, v35')
    a('v_lshl_add_u32 v241, v29, 3, v36')
    a(f's_lshr_b32 s{gT0}, s{gW}, 1\ns_lshl_b32 s{gT0}, s{gT0}, 7\ns_and_b32 s{gT1}, s{gW}, 1\ns_lshl_b32 s{gT1}, s{gT1}, 2\ns_add_u32 s{gT0}, s{gT0}, s{gT1}')
    a(f'v_add_u32 v241, s{gT0}, v241')
    a('v_lshlrev_b32 v36, 14, v30\nv_lshl_add_u32 v36, v35, 2, v36')
    a(f's_lshl_b32 s{gT0}, s{xH}, 17')
    a(f'v_add_u32 v242, s{gT0}, v36')
    a('s_waitcnt lgkmcnt(0)')
    srd(a, 24, 76, 77, 4194304); srd(a, 28, 78, 79, 4194304); srd(a, 32, 80, 81, 4194304); srd(a, oSRD, 82, 83, 2048 * 2048)
    a(f's_mov_b32 s{gT1}, 0x05040100\ns_mov_b32 s{gT2}, 0x07060302')
    a('s_barrier')
    for k in range(4):
        for r in range(4):
            for b in range(2):
                row = 64 * (k >> 1) + 2 * (k & 1) + 4 * r + b
                d = 48 + k * 32 + (r * 2 + b) * 4
                a(f's_mov_b32 s{gT0}, {row*1024}')
                vm.issue(f'buffer_load_dwordx4 v[{d}:{d+3}], v242, s[32:35], s{gT0} offen', tag=('o', k))
    for k in range(4):
        vm.wait(('o', k))
        for t in range(8):
            d = 176 + t * 4
            for r in range(4):
                b0 = 48 + k * 32 + r * 8
                a(f'v_perm_b32 v{d+r}, v{b0+4+(t>>1)}, v{b0+(t>>1)}, s{gT1 if t % 2 == 0 else gT2}')
            lg.issue(f'ds_write_b128 v{vWL}, v[{d}:{d+3}] offset:{k*8192 + t*1024}')
        lg.wait_all()
    jobs = [(m, j) for m in 'KV' for j in range(8)]
    def issue_job(n):
        m, j = jobs[n]; g = 48 + (n % 4) * 16
        for rho in range(8):
            for b in range(2):
                row = 64 * j + 32 * (rho >> 2) + 8 * ((rho >> 1) & 1) + 4 * (rho & 1) + b
                a(f's_mov_b32 s{gT0}, {row*8192}')
                vm.issue(f'buffer_load_dword v{g+2*rho+b}, v{240 if m == "K" else 241}, s[{24 if m == "K" else 28}:{27 if m == "K" else 31}], s{gT0} offen', tag=('w', n))
    for n in range(3): issue_job(n)
    for n in range(16):
        g = 48 + (n % 4) * 16
        vm.wait(('w', n))
        if n + 3 < 16: issue_job(n + 3)
        for t in range(2):
            for rho in range(8):
                a(f'v_perm_b32 v{176+t*8+rho}, v{g+2*rho+1}, v{g+2*rho}, s{gT1 if t == 0 else gT2}')
        for i in range(16): a(f'v_accvgpr_write_b32 a{n*16+i}, v{176+i}')
    wait_counter(a, DB_INIT, 32 * NX, vt=(T0, T1))
    wait_counter(a, DB_GRP, 32, vt=(T0, T1))
    wait_counter(a, DB_KV + 12, 128, vt=(T0, T1))
    wait_counter(a, DB_Q + 12, 64, vt=(T0, T1))
    if cfg.get('wstamp'): a('s_memrealtime s[90:91]\ns_waitcnt lgkmcnt(0)')
    a(f's_sub_u32 s{xS}, s{sX}, 1')
    a(f's_mov_b32 s{xN}, 0')
    a(f's_lshl_b32 s{xPB}, s{xS}, 21\ns_add_u32 s{xPB}, s{xPB}, {WS_P4}')
    a(f's_lshl_b32 s{xFB}, s{sX}, 8\ns_add_u32 s{xFB}, s{xFB}, {WS_FLAG4}')
    def prefetch():
        a(f's_min_u32 s{gT0}, s{xS}, 63')
        a(f's_cmp_eq_u32 s{gT0}, 0\ns_cselect_b32 s{gT1}, 64, s{gT0}')
        a(f's_lshl_b32 s{xMH}, s{gT1}, 13\ns_add_u32 s{xMH}, s{xMH}, {WS_MH}\ns_add_u32 s{gT3}, s{xMH}, 4096')
        a(f's_lshl_b32 s{gT0}, s{gT0}, 18\ns_lshl_b32 s{gT1}, s{xH}, 13\ns_add_u32 s{gT0}, s{gT0}, s{gT1}')
        a(f's_add_u32 s{xK}, s{gT0}, {WS_KX}\ns_add_u32 s{gT2}, s{xK}, 4096')
        a(f's_and_b32 s{gT1}, s{gW}, 1\ns_lshl_b32 s{gT1}, s{gT1}, 12\ns_add_u32 s{xQ}, s{gT0}, s{gT1}\ns_add_u32 s{xQ}, s{xQ}, {WS_QX}')
        a(f's_lshr_b32 s{gT1}, s{gW}, 1\ns_lshl_b32 s{gT1}, s{gT1}, 12\ns_add_u32 s{xV}, s{gT0}, s{gT1}\ns_add_u32 s{xV}, s{xV}, {WS_VX}')
        for k in range(4): a(f'buffer_load_dwordx4 v[{QF[k]}:{QF[k]+3}], v{vL16}, {WS}, s{xQ} offen offset:{k*1024} sc1')
        for k in range(8): a(f'buffer_load_dwordx4 v[{KX[k]}:{KX[k]+3}], v{vL16}, {WS}, s{xK if k < 4 else gT2} offen offset:{(k&3)*1024} sc1')
        for k in range(4): a(f'buffer_load_dwordx4 v[{VX[k]}:{VX[k]+3}], v{vL16}, {WS}, s{xV} offen offset:{k*1024} sc1')
    def memload():
        a(f's_add_u32 s{gT3}, s{xMH}, 4096')
        for k in range(8): a(f'buffer_load_dwordx4 v[{MF[k]}:{MF[k]+3}], v{vL16}, {WS}, s{xMH if k < 4 else gT3} offen offset:{(k&3)*1024} sc1')
    def mf32(d, A, B, c):
        a(f'v_mfma_f32_16x16x32_bf16 v[{d}:{d+3}], v[{A}:{A+3}], v[{B}:{B+3}], {"0" if c is None else f"v[{c}:{c+3}]"}')
    def mf16(d, A, B):
        a(f'v_mfma_f32_16x16x16_bf16 v[{d}:{d+3}], v[{A}:{A+1}], v[{B}:{B+1}], v[{d}:{d+3}]')
    prefetch()
    a('L_xa_loop:')
    lg.reset(); vm.reset()
    a(f's_mov_b32 s{xRET}, 0')
    for r in range(0, 16, 2): a(f'v_mov_b64 v[{AK[0]+r}:{AK[0]+r+1}], 0')
    memload()
    a('s_waitcnt vmcnt(8)')
    for k in range(4):
        mf32(S0, KX[k], QF[k], BIAS if k == 0 else S0)
        mf32(S1, KX[4 + k], QF[k], BIAS + 4 if k == 0 else S1)
    a('L_xa_poll:')
    a('s_waitcnt vmcnt(0)')
    regs = list(range(MF[0], MF[0] + 32))
    a(f'v_max3_u32 v{T0}, v{regs[0]}, v{regs[1]}, v{regs[2]}')
    a(f'v_max3_u32 v{T1}, v{regs[3]}, v{regs[4]}, v{regs[5]}')
    for i in range(6, 32, 2): a(f'v_max3_u32 v{T0 if i % 4 else T1}, v{T0 if i % 4 else T1}, v{regs[i]}, v{regs[i+1]}')
    a(f'v_max_u32 v{T0}, v{T0}, v{T1}')
    a(f'v_cmp_eq_u32 vcc, -1, v{T0}')
    a(f's_add_u32 s{xRET}, s{xRET}, 1')
    a(f's_cmp_ge_u32 s{xRET}, {SPIN}')
    a('s_cbranch_scc1 L_xa_go')
    a('s_cbranch_vccz L_xa_go')
    a('s_mov_b64 exec, vcc')
    memload()
    a('s_mov_b64 exec, -1')
    a('s_branch L_xa_poll')
    a('L_xa_go:')
    def smf(acc, j, n, t): a(f'v_smfmac_f32_16x16x64_bf16 v[{acc}:{acc+3}], v[{MF[j]}:{MF[j]+3}], a[{n*16+t*8}:{n*16+t*8+7}], v{vIDX}')
    for j in range(8):
        smf(AK[0], j, j, 0); smf(AK[1], j, j, 1)
    k0, k1 = AK
    for j in range(8):
        smf(AV[0], j, 8 + j, 0)
        if j in (2, 3): a(f'v_cvt_pk_bf16_f32 v{k0+2*(j-2)}, v{k0+2*(j-2)}, v{k1+2*(j-2)}')
        smf(AV[1], j, 8 + j, 1)
        if j in (2, 3):
            a(f'v_cvt_pk_bf16_f32 v{k0+2*(j-2)+1}, v{k0+2*(j-2)+1}, v{k1+2*(j-2)+1}')
            lg.issue(f'ds_write2_b32 v{vKW}, v{k0+2*(j-2)}, v{k0+2*(j-2)+1} offset0:{160*(j-2)} offset1:{160*(j-2)+80}')
        if j == 6:
            lg.wait_all(); a('s_barrier')
            for k in range(4): lg.issue(f'ds_read_b128 v[{KF[k]}:{KF[k]+3}], v{vKR} offset:{64*k}', tag=('kf', k))
    for k in range(4):
        lg.wait(('kf', k)); mf32(SM, KF[k], QF[k], None if k == 0 else SM)
    for t in range(2):
        a(f'v_cvt_pk_bf16_f32 v{k1+2*t}, v{AV[t]}, v{AV[t]+1}')
        a(f'v_cvt_pk_bf16_f32 v{k1+2*t+1}, v{AV[t]+2}, v{AV[t]+3}')
    a(f's_lshl_b32 s{gT0}, s{gW}, 10')
    a(f'v_add_u32 v{T0}, s{gT0}, v{vL16}')
    lg.issue(f'ds_write_b128 v{T0}, v[{k1}:{k1+3}] offset:{L_V}', tag='vw')
    a(f'v_permlane32_swap_b32 v{SM}, v{SM+2}\nv_permlane32_swap_b32 v{SM+1}, v{SM+3}')
    a(f'v_add_f32 v{SM}, v{SM}, v{SM+2}\nv_add_f32 v{SM+1}, v{SM+1}, v{SM+3}')
    a(f'v_mul_f32 v{SM}, s{xC}, v{SM}\nv_mul_f32 v{SM+1}, s{xC}, v{SM+1}')
    alls = [S0 + r for r in range(4)] + [S1 + r for r in range(4)] + [SM, SM + 1]
    a(f'v_max3_f32 v{T0}, v{alls[0]}, v{alls[1]}, v{alls[2]}')
    for i in range(3, 9, 2): a(f'v_max3_f32 v{T0}, v{T0}, v{alls[i]}, v{alls[i+1]}')
    a(f'v_max_f32 v{T0}, v{T0}, v{alls[9]}')
    for sw in ('16', '32'):
        a(f'v_mov_b32 v{T1}, v{T0}')
        a(f'v_permlane{sw}_swap_b32 v{T0}, v{T1}')
        a(f'v_max_f32 v{T0}, v{T0}, v{T1}')
    lg.wait('vw'); a('s_barrier')
    a(f's_lshr_b32 s{gT0}, s{gW}, 1\ns_lshl_b32 s{gT0}, s{gT0}, 11')
    a(f'v_add_u32 v{T1}, s{gT0}, v{vL16}')
    for i in range(2): lg.issue(f'ds_read_b128 v[{VM[i]}:{VM[i]+3}], v{T1} offset:{L_V + 1024*i}', tag='vm')
    for r in alls:
        a(f'v_sub_f32 v{r}, v{r}, v{T0}')
        a(f'v_exp_f32 v{r}, v{r}')
    a(f'v_cvt_pk_bf16_f32 v{PX}, v{S0}, v{S0+1}\nv_cvt_pk_bf16_f32 v{PX+1}, v{S0+2}, v{S0+3}')
    a(f'v_cvt_pk_bf16_f32 v{PX+2}, v{S1}, v{S1+1}\nv_cvt_pk_bf16_f32 v{PX+3}, v{S1+2}, v{S1+3}')
    a(f'v_cvt_pk_bf16_f32 v{SM}, v{SM}, v{SM+1}\nv_mov_b32 v{SM+1}, v{SM}')
    mf32(LL, ONES, PX, None)
    a(f'v_permlane32_swap_b32 v{SM}, v{SM+1}')
    for i in range(4): mf32(OA[i], VX[i], PX, None)
    mf16(LL, ONES, SM)
    lg.wait('vm')
    for i in range(4): mf16(OA[i], VM[i >> 1] + 2 * (i & 1), SM)
    wl = [(k, t) for t in range(8) for k in range(4)]
    def wread(n):
        k, t = wl[n]
        lg.issue(f'ds_read_b128 v[{WFR[n % 6]}:{WFR[n % 6]+3}], v{vWL} offset:{k*8192 + t*1024}', tag=('wf', n))
    WFR = [200 + 4 * i for i in range(6)]
    for n in range(4): wread(n)
    a(f'v_rcp_f32 v{T0}, v{LL}')
    for i in range(4):
        for r in range(4): a(f'v_mul_f32 v{OA[i]+r}, v{OA[i]+r}, v{T0}')
    a(f's_and_b32 s{gT1}, s{gW}, 1\ns_lshl_b32 s{gT1}, s{gT1}, 12\ns_add_u32 s{gT0}, s{gT0}, s{gT1}')
    a(f'v_add_u32 v{T1}, s{gT0}, v{vL16}')
    for i in range(2):
        for r in range(4): a(f'v_cvt_pk_bf16_f32 v{S0+4*i+r}, v{OA[2*i]+r}, v{OA[2*i+1]+r}')
        lg.issue(f'ds_write_b128 v{T1}, v[{S0+4*i}:{S0+4*i+3}] offset:{L_O + 1024*i}', tag='ow')
    lg.wait('ow'); a('s_barrier')
    for i in (0, 4, 1, 5, 2, 6, 3, 7): lg.issue(f'ds_read_b128 v[{OF[i]}:{OF[i]+3}], v{vL16} offset:{L_O + 1024*i}', tag=('of', i))
    a(f's_and_b32 s{gT0}, s{xN}, 1\ns_lshl_b32 s{gT0}, s{gT0}, 20\ns_add_u32 s{gT0}, s{gT0}, s{xPB}')
    a(f's_lshl_b32 s{gT1}, s{xH}, 15\ns_add_u32 s{xPR}, s{gT0}, s{gT1}')
    a(f's_lshl_b32 s{gT1}, s{gW}, 18\ns_add_u32 s{xPW}, s{gT0}, s{gT1}\ns_lshl_b32 s{gT1}, s{xH}, 10\ns_add_u32 s{xPW}, s{xPW}, s{gT1}')
    for n in range(32):
        k, t = wl[n]
        lg.wait(('wf', n))
        if n < 4: lg.wait(('of', 4 + k))
        for u in range(2):
            d = WACC + (u * 8 + t) * 4
            mf32(d, WFR[n % 6], OF[u * 4 + k], None if k == 0 else d)
            if u == 0 and n + 4 < 32: wread(n + 4)
    for u in range(2):
        for r in range(4):
            d = STD[u * 4 + r]
            for p in range(4): a(f'v_cvt_pk_bf16_f32 v{d+p}, v{WACC + (u*8+2*p)*4 + r}, v{WACC + (u*8+2*p+1)*4 + r}')
            a(f'buffer_store_dwordx4 v[{d}:{d+3}], v{vL16}, {WS}, s{xPW} offen')
            a(f's_add_u32 s{xPW}, s{xPW}, 32768')
    a(f's_lshl_b32 s{xOB}, s{xS}, 16')
    a(f's_add_u32 s{xS}, s{xS}, {NX}')
    a(f's_add_u32 s{xN}, s{xN}, 1')
    a('s_waitcnt vmcnt(0)')
    a('s_barrier')
    a(f's_cmp_eq_u32 s{gW}, 0')
    a('s_cbranch_scc0 L_xa_fw')
    a(f's_lshl_b32 s{gT0}, s{xH}, 2')
    a(f'v_mov_b32 v{T0}, s{gT0}\nv_mov_b32 v{T1}, s{xN}')
    a(f'buffer_store_dword v{T1}, v{T0}, {WS}, s{xFB} offen')
    a(f's_mov_b32 s{xRET}, 0')
    a('L_xa_fl:')
    a(f'buffer_load_dword v{T1}, v{vFL}, {WS}, s{xFB} offen sc1')
    a('s_waitcnt vmcnt(0)')
    a(f'v_cmp_gt_u32 vcc, s{xN}, v{T1}')
    a(f's_add_u32 s{xRET}, s{xRET}, 1')
    a(f's_cmp_ge_u32 s{xRET}, {SPIN}')
    a('s_cbranch_scc1 L_xa_fw')
    a('s_cbranch_vccnz L_xa_fl')
    a('L_xa_fw:')
    a('s_barrier')
    for l in range(8):
        a(f'buffer_load_dwordx4 v[{RL[l]}:{RL[l]+3}], v{vRD}, {WS}, s{xPR} offen sc1')
        a(f's_add_u32 s{xPR}, s{xPR}, 4096')
    prefetch()
    for l in range(8):
        a(f's_waitcnt vmcnt({16 + 7 - l})')
        mf32(RACC, SEL, RL[l], None if l == 0 else RACC)
    a(f'v_cvt_pk_bf16_f32 v{RACC+2}, v{RACC}, v{RACC+1}')
    a(f'buffer_store_dword v{RACC+2}, v{vOUT}, s[{oSRD}:{oSRD+3}], s{xOB} offen')
    a(f's_cmp_lt_u32 s{xS}, 64')
    a('s_cbranch_scc1 L_xa_loop')
```

```python
import sys
from common import *
import rec, gemm, battn, xattn
from gemm import *

def f32bits(x):
    import struct
    return struct.unpack('<I', struct.pack('<f', x))[0]
LOG2E = 1.4426950408889634

sX, sT = 60, 61

def emit_worker(a, cfg):
    a('L_worker:')
    a(f's_load_dwordx2 s[64:65], s[0:1], {KA_X}')
    a(f's_load_dwordx4 s[68:71], s[0:1], {KA_WQ}')
    a(f's_load_dwordx2 s[72:73], s[0:1], {KA_WV}')
    a(f's_load_dwordx4 s[76:79], s[0:1], {KA_BX}')
    if cfg.get('wstamp'): a('s_memrealtime s[92:93]')
    a(f's_cmp_gt_u32 s{sX}, {xattn.NX}')
    a('s_cbranch_scc1 L_noinit')
    a(f's_cmp_eq_u32 s{gW}, 0')
    a('s_cbranch_scc0 L_noinit')
    a(f's_lshl_b32 s{gT0}, s{sX}, 8\ns_lshl_b32 s{gT1}, s{sT}, 2\ns_add_u32 s{gT0}, s{gT0}, s{gT1}\ns_add_u32 s{gT0}, s{gT0}, {WS_FLAG4}')
    a(f'v_mov_b32 v24, 0\nv_mov_b32 v25, 1\nv_mov_b32 v26, {DB_INIT}')
    a('s_mov_b64 exec, 1')
    a(f'buffer_store_dword v24, v24, s[{gWS}:{gWS+3}], s{gT0} offen')
    a('s_waitcnt vmcnt(0)')
    a(f'global_atomic_add v26, v25, s[{gDBG}:{gDBG+1}]')
    a('s_mov_b64 exec, -1')
    a('L_noinit:')
    a('v_and_b32 v24, 63, v0')
    a('v_and_b32 v25, 15, v24')
    a('v_lshrrev_b32 v26, 4, v24')
    a(f'v_lshlrev_b32 v{xSRC}, 4, v24')
    for i in range(3): a(f's_mov_b32 s{gDS+i}, s{gWS+i}')
    a(f's_mov_b32 s{gDS+3}, 0x00020000')
    a(f's_mov_b32 s{gXROW}, 1024')
    a(f's_mov_b32 s{gXSTEP}, {4*32768}')
    a(f's_mov_b32 s{gCNT}, 16')
    a(f's_and_b32 s{gT1}, s{sT}, 3')
    a(f's_lshl_b32 s{gXB}, s{gT1}, 15')
    a(f's_lshr_b32 s{gT2}, s{sT}, 2')
    a('s_waitcnt lgkmcnt(0)')
    a(f's_cmp_eq_u32 s{sX}, 7')
    a('s_cbranch_scc1 L_g1_b')
    a(f's_sub_u32 s{gT3}, s{sX}, 1')
    a(f's_lshl_b32 s{gT3}, s{gT3}, 3')
    a(f's_add_u32 s{gT3}, s{gT3}, s{gT2}')
    a(f's_mul_i32 s{gT2}, s{gT3}, 171')
    a(f's_lshr_b32 s{gT2}, s{gT2}, 9')
    a(f's_mul_i32 s{gT0}, s{gT2}, 3')
    a(f's_sub_u32 s{gT3}, s{gT3}, s{gT0}')
    a(f's_mov_b32 s{gWRS}, 8192')
    a(f's_mov_b32 s{gDSTEP}, {4*SEGB}')
    a(f's_mul_i32 s{gDB}, s{gT1}, {SEGB}')
    srd(a, gXS, 64, 65, 2048 * 1024)
    a(f's_mov_b32 s{gSIGSTEP}, 4')
    a(f's_cmp_eq_u32 s{gT3}, 1')
    a('s_cbranch_scc1 L_g1_v')
    a(f's_cmp_eq_u32 s{gT3}, 2')
    a('s_cbranch_scc1 L_g1_q')
    for lab, lo, base, sc, typ, sig in (('L_g1_k', 70, WS_KX, 128 ** -0.5 * LOG2E, 0, DB_KV), ('L_g1_v', 72, WS_VX, 0.5, 1, DB_KV), ('L_g1_q', 68, WS_QX, 1.0, 0, DB_Q)):
        a(f'{lab}:')
        srd(a, gWTS, lo, lo + 1, 4194304)
        a(f's_add_u32 s{gDB}, s{gDB}, {base}')
        a(f's_mov_b32 s{gSC}, {f32bits(sc):#x}\ns_mov_b32 s{gSC+1}, {f32bits(sc):#x}')
        a(f's_mov_b32 s{gTYPE}, {typ}')
        a(f's_mov_b32 s{gSIG}, {sig}')
        a('s_branch L_g1_go')
    a('L_g1_b:')
    a(f's_cmp_ge_u32 s{gT2}, 6')
    a('s_cbranch_scc1 L_g1_done')
    srd(a, gXS, 76, 77, 2048 * 1024)
    srd(a, gWTS, 78, 79, 512 * 3072)
    a(f's_mov_b32 s{gWRS}, 3072')
    a(f's_mov_b32 s{gDSTEP}, {4*BSEG}')
    a(f's_mul_i32 s{gDB}, s{gT1}, {BSEG}')
    a(f's_add_u32 s{gDB}, s{gDB}, {WS_BQKV}')
    a(f's_mov_b32 s{gSIG}, {DB_BQKV}\ns_mov_b32 s{gSIGSTEP}, 0')
    a(f's_cmp_lt_u32 s{gT2}, 2')
    a(f's_cselect_b32 s{gSC}, {f32bits(0.25 * LOG2E):#x}, 1.0')
    a(f's_mov_b32 s{gSC+1}, s{gSC}')
    a(f's_cmp_ge_u32 s{gT2}, 4')
    a(f's_cselect_b32 s{gTYPE}, 1, 0')
    a('L_g1_go:')
    a(f's_lshl_b32 s{gWB}, s{gT2}, 9')
    a(f's_lshl_b32 s{gT0}, s{gW}, 7')
    a(f's_add_u32 s{gWB}, s{gWB}, s{gT0}')
    a(f's_lshl_b32 s{gT0}, s{gT2}, 14')
    a(f's_add_u32 s{gDB}, s{gDB}, s{gT0}')
    a(f's_lshr_b32 s{gT0}, s{gW}, 1')
    a(f's_lshl_b32 s{gT0}, s{gT0}, 13')
    a(f's_add_u32 s{gDB}, s{gDB}, s{gT0}')
    a(f's_and_b32 s{gT0}, s{gW}, 1')
    a(f's_add_u32 s{gT1}, s{gTYPE}, 11')
    a(f's_lshl_b32 s{gT0}, s{gT0}, s{gT1}')
    a(f's_add_u32 s{gDB}, s{gDB}, s{gT0}')
    a(f's_sub_u32 s{gT1}, 9, s{gTYPE}')
    a(f'v_lshlrev_b32 v{xD}, s{gT1}, v26')
    a(f'v_lshl_add_u32 v{xD}, v25, 4, v{xD}')
    call_gemm(a)
    a('L_g1_done:')
    if cfg.get('wstamp'): a('s_memrealtime s[96:97]\ns_waitcnt lgkmcnt(0)\ns_mov_b32 s100, s94')
    a(f's_cmp_gt_u32 s{sX}, {xattn.NX}')
    a('s_cbranch_scc1 L_bpart')
    if not cfg.get('noxa'): xattn.emit_xattn(a, cfg, sX, sT)
    a('s_branch L_wend')
    a('L_bpart:')
    a(f's_mov_b32 s{battn.bHD}, s{sT}')
    a(f's_sub_u32 s70, s{sX}, 4')
    a(f's_lshl_b32 s{battn.bQT}, s70, 4')
    a(f's_mov_b32 s{battn.bPASS}, 2')
    battn.emit_battn(a, cfg)
    if cfg.get('wstamp'): a('s_memrealtime s[90:91]\ns_waitcnt lgkmcnt(0)')
    a(f's_load_dwordx4 s[72:75], s[0:1], {KA_BWO}')
    for x in range(4):
        a(f's_cmp_eq_u32 s70, {x}')
        a(f's_cbranch_scc0 L_bw{x}')
        battn.wait_counter(a, DB_BATT + 4 * x, 32)
        a(f'L_bw{x}:')
    a('s_waitcnt lgkmcnt(0)')
    for i in range(3): a(f's_mov_b32 s{gXS+i}, s{gWS+i}')
    a(f's_mov_b32 s{gXS+3}, 0x00020000')
    srd(a, gWTS, 72, 73, 512 * 1024); srd(a, gDS, 74, 75, 2048 * 2048)
    a(f's_lshr_b32 s{gT1}, s{sT}, 1\ns_lshl_b32 s{gT0}, s70, 4\ns_add_u32 s{gT1}, s{gT1}, s{gT0}')
    a(f's_lshl_b32 s{gXB}, s{gT1}, 15\ns_add_u32 s{gXB}, s{gXB}, {WS_BO}')
    a(f's_mov_b32 s{gXROW}, 16\ns_mov_b32 s{gXSTEP}, 0\ns_mov_b32 s{gCNT}, 1\ns_mov_b32 s{gTYPE}, 2\ns_mov_b32 s{gWRS}, 1024')
    a(f's_and_b32 s{gT2}, s{sT}, 1\ns_lshl_b32 s{gWB}, s{gT2}, 9\ns_lshl_b32 s{gT0}, s{gW}, 7\ns_add_u32 s{gWB}, s{gWB}, s{gT0}')
    a(f's_lshl_b32 s{gDB}, s{gT1}, 16\ns_add_u32 s{gDB}, s{gDB}, s{gWB}\ns_add_u32 s{gDB}, s{gDB}, 1024\ns_mov_b32 s{gDSTEP}, 0')
    a(f's_mov_b32 s{gSC}, 1.0\ns_mov_b32 s{gSC+1}, 1.0\ns_mov_b32 s{gSIG}, {DB_DUMMY}\ns_mov_b32 s{gSIGSTEP}, 0')
    a('v_and_b32 v24, 63, v0')
    a(f'v_lshlrev_b32 v{xSRC}, 9, v24')
    a('v_bfe_u32 v25, v24, 2, 2\nv_and_b32 v26, 3, v24\nv_lshl_add_u32 v25, v25, 3, v26\nv_lshlrev_b32 v25, 11, v25\nv_lshrrev_b32 v26, 4, v24')
    a(f'v_lshl_add_u32 v{xD}, v26, 5, v25')
    call_gemm(a)
    a('L_wend:')
    if cfg.get('wstamp'):
        a('s_waitcnt vmcnt(0)\ns_memrealtime s[88:89]\ns_waitcnt lgkmcnt(0)')
        a(f's_lshl_b32 s{gT0}, s{sX}, 5\ns_add_u32 s{gT0}, s{gT0}, s{sT}\ns_lshl_b32 s{gT0}, s{gT0}, 6\ns_add_u32 s{gT0}, s{gT0}, {WS_STAMP + 0x4000}')
        a('v_mov_b32 v10, 0')
        for i, sr in enumerate((98, 92, 100, 96, 90, 88)):
            a(f'v_mov_b32 v11, s{sr}\nbuffer_store_dword v11, v10, s[{gWS}:{gWS+3}], s{gT0} offen offset:{4*i}')
        a('s_waitcnt vmcnt(0)')
    a('s_endpgm')
    emit_gemm(a, cfg)

def build(cfg, path):
    a = Asm()
    a(f'{KNAME}:')
    if cfg.get('total_stamp') or cfg.get('wstamp'): a('s_memrealtime s[98:99]')
    a('s_cmp_ge_u32 s2, 256\ns_cbranch_scc1 L_exit')
    a(f's_load_dwordx4 s[4:7], s[0:1], {KA_DBG}')
    a(f's_getreg_b32 s{sX}, hwreg(HW_REG_XCC_ID, 0, 3)')
    a('v_lshrrev_b32 v1, 6, v0')
    a(f'v_readfirstlane_b32 s{rec.sW}, v1')
    a(f's_lshl_b32 s3, s{sX}, 2')
    a(f's_cmp_eq_u32 s{sX}, 0')
    a(f's_cselect_b32 s3, {DB_T0}, s3')
    a('v_mov_b32 v3, s3\nv_mov_b32 v4, 1\nv_mov_b32 v6, 0')
    a('s_waitcnt lgkmcnt(0)')
    a(f's_mov_b32 s{rec.sDBG}, s4\ns_mov_b32 s{rec.sDBG+1}, s5')
    srd(a, rec.sWS, 6, 7, WS_BYTES)
    a(f's_cmp_eq_u32 s{rec.sW}, 0')
    a('s_cbranch_scc0 L_noatom')
    a('s_mov_b64 exec, 1')
    a(f'global_atomic_add v5, v3, v4, s[{rec.sDBG}:{rec.sDBG+1}] sc0')
    a('s_waitcnt vmcnt(0)')
    a('ds_write_b32 v6, v5')
    a('s_waitcnt lgkmcnt(0)')
    a('s_mov_b64 exec, -1')
    a('L_noatom:')
    a('s_barrier')
    a('ds_read_b32 v5, v6')
    a('s_waitcnt lgkmcnt(0)')
    a(f'v_readfirstlane_b32 s{sT}, v5')
    a('s_barrier')
    a(f's_cmp_ge_u32 s{sT}, 32\ns_cbranch_scc1 L_exit')
    a(f's_cmp_lg_u32 s{sX}, 0')
    a('s_cbranch_scc1 L_worker' if not cfg.get('noworkers') else 's_cbranch_scc1 L_exit')
    if cfg.get('norec'): a('s_branch L_exit')
    a(f's_mov_b32 s{rec.sH}, s{sT}')
    rec.emit_rec(a, cfg)
    a('L_exit:\ns_endpgm')
    if not cfg.get('noworkers'): emit_worker(a, cfg)
    head = f'''; Kernarg: 13 pointers: A_x, A_mem0, A_Wq, A_Wk, A_Wv, A_Wo, A_seg_len, B_x, B_wqkv, B_wo, out, debug, ws
; @launch grid=(256,1,1) block=(256,1,1) lds=163840
.amdgcn_target "amdgcn-amd-amdhsa--gfx950"
.text
.globl {KNAME}
.p2align 8
.type {KNAME},@function
'''
    tail = f'''.section .rodata,"a"
.p2align 6
.amdhsa_kernel {KNAME}
  .amdhsa_next_free_vgpr 512
  .amdhsa_next_free_sgpr 102
  .amdhsa_accum_offset 256
  .amdhsa_group_segment_fixed_size 0
  .amdhsa_kernarg_size 104
  .amdhsa_user_sgpr_count 2
  .amdhsa_user_sgpr_kernarg_segment_ptr 1
  .amdhsa_system_sgpr_workgroup_id_x 1
.end_amdhsa_kernel
'''
    open(path, 'w').write(head + a.finish() + tail)

if __name__ == '__main__':
    import json
    if len(sys.argv) > 1 and sys.argv[1] == 'final':
        build({}, 'concat_heads__memory_aug_recurrent_mem_tr__mha_block__prompt.s'); sys.exit(0)
    V = eval(sys.argv[1]) if len(sys.argv) > 1 else {'full': dict(total_stamp=True, wstamp=True)}
    for n, c in V.items():
        build(c, f'work/{n}.s')
    json.dump({n: c.get('marks') for n, c in V.items()}, open('rec_variants.json', 'w'))
```
